```python
import torch

def _softmax(x, axis=-1):
    return torch.softmax(x, dim=axis)
def _gelu(x):
    return torch.nn.functional.gelu(x, approximate="tanh")
def _silu(x):
    return torch.nn.functional.silu(x)
def _sigmoid(x):
    return torch.sigmoid(x)
def _layernorm(x, axis=-1, eps=1e-5):
    m = x.mean(dim=axis, keepdim=True)
    v = x.var(dim=axis, keepdim=True, unbiased=False)
    return (x - m) / torch.sqrt(v + eps)
def _scatter_add(tgt, idx, src, axis=0):
    return tgt.clone().index_add_(axis, idx, src)
def _segment_sum(src, seg, n):
    out = torch.zeros((n,) + src.shape[1:], dtype=src.dtype)
    return out.index_add_(0, seg, src)
def _pad(x, pw):
    flat = tuple(v for pair in reversed(pw) for v in pair)
    return torch.nn.functional.pad(x, flat)

kernel_name = 'gated_mix__ssm_conv_s5__glu_gated_geglu__prompt'

def setup_inputs():

    _w = (lambda a: (lambda t: t.to(torch.bfloat16) if t.is_floating_point() else t)(torch.as_tensor(a)))
    def _A_setup():
        B, S, D = 1, 2048, 448
        P = D
        Lambda_re = -0.5 * (lambda _x: torch.exp(torch.as_tensor(_x)))((lambda *s: torch.randn(*s, dtype=torch.bfloat16) * 0.4)(P))
        Lambda_im = (lambda *s: torch.randn(*s, dtype=torch.bfloat16) * 0.8)(P) * 1.0
        B_re = (lambda *s: torch.randn(*s, dtype=torch.bfloat16) * 0.8)(P, D) * (D ** -0.5)
        B_im = (lambda *s: torch.randn(*s, dtype=torch.bfloat16) * 0.8)(P, D) * (D ** -0.5)
        C_re = (lambda *s: torch.randn(*s, dtype=torch.bfloat16) * 0.8)(D, P) * (P ** -0.5)
        C_im = (lambda *s: torch.randn(*s, dtype=torch.bfloat16) * 0.8)(D, P) * (P ** -0.5)
        log_dt = (lambda *s: torch.randn(*s, dtype=torch.bfloat16) * 0.4)(P) * 0.3 - 2.0
        Dskip = (lambda *s: torch.randn(*s, dtype=torch.bfloat16) * 0.1)(D)
        return {
            "x": _w((lambda *s: torch.randn(*s, dtype=torch.bfloat16) * 0.05)(B, S, D)),
            "Lambda_re": _w(Lambda_re),
            "Lambda_im": _w(Lambda_im),
            "B_re": _w(B_re),
            "B_im": _w(B_im),
            "C_re": _w(C_re),
            "C_im": _w(C_im),
            "log_dt": _w(log_dt),
            "Dskip": _w(Dskip),
        }
    _A_in = _A_setup()

    def _B_setup():
        B, S, Dm, Df = 1, 2048, 448, 1792
        return {
            "x": _w((lambda *s: torch.randn(*s, dtype=torch.bfloat16) * 0.05)(B, S, Dm)),
            "w_gate": _w((lambda *s: torch.randn(*s, dtype=torch.bfloat16) * 3.2)(Dm, Df) * (Dm ** -0.5)),
            "w_up": _w((lambda *s: torch.randn(*s, dtype=torch.bfloat16) * 3.2)(Dm, Df) * (Dm ** -0.5)),
            "w_down": _w((lambda *s: torch.randn(*s, dtype=torch.bfloat16) * 3.2)(Df, Dm) * (Df ** -0.5)),
        }
    _B_in = _B_setup()

    return {
        "A_x": _A_in["x"],
        "A_Lambda_re": _A_in["Lambda_re"],
        "A_Lambda_im": _A_in["Lambda_im"],
        "A_B_re": _A_in["B_re"],
        "A_B_im": _A_in["B_im"],
        "A_C_re": _A_in["C_re"],
        "A_C_im": _A_in["C_im"],
        "A_log_dt": _A_in["log_dt"],
        "A_Dskip": _A_in["Dskip"],
        "B_x": _B_in["x"],
        "B_w_gate": _B_in["w_gate"],
        "B_w_up": _B_in["w_up"],
        "B_w_down": _B_in["w_down"],
        "gate_w": _w((lambda *s: torch.randn(*s, dtype=torch.bfloat16) * 0.05)(448) * 16.0),
    }

def reference(A_x, A_Lambda_re, A_Lambda_im, A_B_re, A_B_im, A_C_re, A_C_im, A_log_dt, A_Dskip, B_x, B_w_gate, B_w_up, B_w_down, gate_w):
    def _A_ref(x, Lambda_re, Lambda_im, B_re, B_im, C_re, C_im, log_dt, Dskip):
        Bsz, L, H = x.shape
        Lam = Lambda_re + 1j * Lambda_im
        Bmat = B_re + 1j * B_im
        Cmat = C_re + 1j * C_im
        dt = torch.exp(log_dt)
        Lam_bar = torch.exp(dt * Lam)
        B_bar = ((Lam_bar - 1.0) / Lam)[:, None] * Bmat
        Bu = torch.einsum("bld,pd->blp", x + 0j, B_bar)
        h = torch.zeros_like(Bu[:, 0, :])
        hs = []
        for t in range(L):
            h = Lam_bar[None, :] * h + Bu[:, t, :]
            hs.append(h)
        hseq = torch.stack(hs, 1)
        y = 2.0 * torch.einsum("blp,dp->bld", hseq, Cmat).real + x * Dskip[None, None, :]
        return y

    def _B_ref(x, w_gate, w_up, w_down):
        g = torch.einsum("bsd,df->bsf", x, w_gate)
        u = torch.einsum("bsd,df->bsf", x, w_up)
        h = _gelu(g) * u
        return torch.einsum("bsf,fd->bsd", h, w_down)

    x = A_x
    g = _sigmoid((x * gate_w).sum(-1, keepdims=True))
    a = _A_ref(x, A_Lambda_re, A_Lambda_im, A_B_re, A_B_im, A_C_re, A_C_im, A_log_dt, A_Dskip)
    b = _B_ref(x, B_w_gate, B_w_up, B_w_down)
    return g * a + (1 - g) * b
```

```python
import sys, struct, math
NAME = "gated_mix__ssm_conv_s5__glu_gated_geglu__prompt"
OPT = dict(D2=8, MAP1="4x7", STAMP=0)
for a in sys.argv[2:]:
    k, v = a.split("="); OPT[k] = int(v) if v.lstrip("-").isdigit() else v
out = []
def E(s): out.append("    " + s)
def L(s): out.append(s + ":")
def C(s): out.append("    ; " + s)
def f2u(x): return "0x%08x" % struct.unpack("<I", struct.pack("<f", x))[0]
def vr(b, n=1): return "v%d" % b if n == 1 else "v[%d:%d]" % (b, b + n - 1)
def ar(b, n=1): return "a%d" % b if n == 1 else "a[%d:%d]" % (b, b + n - 1)
def sr(b, n=1): return "s%d" % b if n == 1 else "s[%d:%d]" % (b, b + n - 1)
def srd(d, p, nbytes):
    E("s_mov_b32 s%d, s%d" % (d, p)); E("s_and_b32 s%d, s%d, 0xffff" % (d + 1, p + 1))
    E("s_mov_b32 s%d, %d" % (d + 2, nbytes)); E("s_mov_b32 s%d, 0x20000" % (d + 3))
NKS = 168
HA0 = 0; HA_SZ = 64 * NKS * 1024
WB0 = HA_SZ; WB_SZ = 14 * NKS * 1024
G0 = WB0 + WB_SZ; E0 = G0 + 8192; WS_SZ = E0 + 14 * 16 * 256
XN = 2048 * 448 * 2; BN = 448 * 448 * 2; WN = 448 * 1792 * 2
P_X, P_LRE, P_LIM, P_BRE, P_BIM, P_CRE, P_CIM, P_LDT = 4, 6, 8, 10, 12, 14, 16, 18
P_D, P_BX, P_WG, P_WU, P_WD, P_GW, P_OUT, P_DBG, P_WS = 20, 22, 24, 26, 28, 30, 32, 34, 36
def load_args():
    E("s_load_dwordx16 s[4:19], s[0:1], 0"); E("s_load_dwordx16 s[20:35], s[0:1], 64")
    E("s_load_dwordx2 s[36:37], s[0:1], 128")
def perm(dst, r, t1):
    E("v_and_b32 %s, 3, %s" % (vr(dst), vr(r)))
    E("v_lshrrev_b32 %s, 3, %s" % (vr(t1), vr(r)))
    E("v_lshl_add_u32 %s, %s, 2, %s" % (vr(dst), vr(t1), vr(dst)))
    E("v_bfe_u32 %s, %s, 2, 1" % (vr(t1), vr(r)))
    E("v_lshl_add_u32 %s, %s, 4, %s" % (vr(dst), vr(t1), vr(dst)))
def cmul(dr, di, ar_, ai, br, bi):
    E("v_mul_f32 %s, %s, %s" % (vr(dr), vr(ar_), vr(br))); E("v_mul_f32 %s, %s, %s" % (vr(di), vr(ar_), vr(bi)))
    E("v_fma_f32 %s, -%s, %s, %s" % (vr(dr), vr(ai), vr(bi), vr(dr))); E("v_fma_f32 %s, %s, %s, %s" % (vr(di), vr(ai), vr(br), vr(di)))
def cfma(dr, di, lr, li, hr, hi, ur, ui):
    E("v_fma_f32 %s, %s, %s, %s" % (vr(dr), vr(lr), vr(hr), vr(ur))); E("v_fma_f32 %s, %s, %s, %s" % (vr(di), vr(lr), vr(hi), vr(ui)))
    E("v_fma_f32 %s, -%s, %s, %s" % (vr(dr), vr(li), vr(hi), vr(dr))); E("v_fma_f32 %s, %s, %s, %s" % (vr(di), vr(li), vr(hr), vr(di)))
def stamp(slot):
    if OPT["STAMP"]:
        E("s_memtime s[90:91]"); E("s_waitcnt lgkmcnt(0)"); E("v_writelane_b32 v255, s90, %d" % slot)

S_X, S_B, S_W, S_WS, S_DBG, S_T = 40, 44, 48, 52, 56, 60
sW, sRT, sCG, sTA, sM1, sM2, sM3 = 64, 65, 66, 67, 68, 69, 70
XBS = [0, 24576, 49152]; WS0 = 73728; EXO = 155648; TRO = 24576
vL, vXD0, vXD1, vBD, vWD = 1, 2, 3, 4, 5
vXA, vXB, vBA, vWA0, vWA1 = 6, 10, 14, 18, 19
vLR, vLI, vCR, vCI, vL16R, vL16I, vL128R, vL128I = 20, 21, 22, 23, 24, 25, 26, 27
vT = 28
FR = [48, 72]
AG = [96, 112]; AU = [128, 144]; ASR, ASI = 160, 176
vEE = 192
vEC = 208
def dma_group(j):
    if j > 13: return
    if j % 2 == 0:
        st = j // 2; slot = XBS[st % 3]
        E("s_mov_b32 s71, %d" % (st * 128))
        E("s_add_u32 m0, s%d, %d" % (sM1, slot)); E("s_nop 0")
        E("buffer_load_dwordx4 %s, %s, s71 offen lds" % (vr(vXD0), sr(S_X, 4)))
        E("s_add_u32 m0, s%d, %d" % (sM1, slot + 1024)); E("s_nop 0")
        E("buffer_load_dwordx4 %s, %s, s71 offen lds" % (vr(vXD1), sr(S_X, 4)))
        E("s_add_u32 m0, s%d, %d" % (sM2, slot + 16384)); E("s_nop 0")
        E("buffer_load_dwordx4 %s, %s, s71 offen lds" % (vr(vBD), sr(S_B, 4)))
    for m in range(2):
        E("s_mov_b32 s71, %d" % ((32 * j + 4 * m) * 3584))
        E("s_add_u32 m0, s%d, %d" % (sM1, WS0 + (j % 5) * 16384 + m * 1024)); E("s_nop 0")
        E("buffer_load_dwordx4 %s, %s, s71 offen lds" % (vr(vWD), sr(S_W, 4)))
def gsize(j): return 0 if j > 13 else (5 if j % 2 == 0 else 2)
def frag_reads(n, ssm):
    F = FR[n & 1]; xs = XBS[(n // 4) % 3]; ks = n % 4; i = n // 2; wsl = i % 5
    wa = vWA0 if wsl < 3 else vWA1; wo = (wsl if wsl < 3 else wsl - 3) * 16384 + (n & 1) * 4096
    r = []
    r.append("ds_read_b64_tr_b16 %s, %s offset:%d" % (vr(F + 8, 2), vr(wa), wo))
    r.append("ds_read_b64_tr_b16 %s, %s offset:%d" % (vr(F + 10, 2), vr(wa), wo + 1024))
    r.append("ds_read_b128 %s, %s offset:%d" % (vr(F, 4), vr(vXA + ks), xs))
    r.append("ds_read_b128 %s, %s offset:%d" % (vr(F + 4, 4), vr(vXB + ks), xs))
    r.append("ds_read_b64_tr_b16 %s, %s offset:%d" % (vr(F + 12, 2), vr(wa), wo + 8192))
    r.append("ds_read_b64_tr_b16 %s, %s offset:%d" % (vr(F + 14, 2), vr(wa), wo + 8192 + 1024))
    if ssm:
        r.append("ds_read_b128 %s, %s offset:%d" % (vr(F + 16, 4), vr(vBA + ks), xs))
        r.append("ds_read_b128 %s, %s offset:%d" % (vr(F + 20, 4), vr(vBA + ks), xs + 4096))
    return r
def mfmas(n, ssm):
    F = FR[n & 1]
    def m(d, a, b): return "v_mfma_f32_32x32x16_bf16 %s, %s, %s, %s" % (vr(d, 16), vr(a, 4), vr(b, 4), vr(d, 16) if n else "0")
    r = [m(AG[0], F + 8, F), m(AG[1], F + 8, F + 4), m(AU[0], F + 12, F), m(AU[1], F + 12, F + 4)]
    if ssm: r += [m(ASR, F, F + 16), m(ASI, F, F + 20)]
    return r
def main_loop(ssm):
    E("s_waitcnt vmcnt(%d)" % (gsize(1) + gsize(2) + gsize(3))); E("s_barrier")
    for s in frag_reads(0, ssm): E(s)
    for n in range(28):
        if n % 2 == 0:
            i = n // 2
            E("s_waitcnt vmcnt(%d) lgkmcnt(0)" % (gsize(i + 2) + gsize(i + 3))); E("s_barrier")
        else:
            E("s_waitcnt lgkmcnt(0)")
        ms = mfmas(n, ssm); rs = frag_reads(n + 1, ssm) if n < 27 else []
        for k, mm in enumerate(ms):
            E(mm)
            for s in rs[2 * k:2 * k + 2]: E(s)
            if k == 3 and n % 2 == 0: dma_group(n // 2 + 4)
def gelu_store(t):
    g, u = AG[t], AU[t]
    for r0 in range(0, 16, 4):
        T = vT
        for i in range(4): E("v_mul_f32 %s, %s, %s" % (vr(T + i), vr(g + r0 + i), vr(g + r0 + i)))
        for i in range(4): E("v_fma_f32 %s, %s, s72, %s" % (vr(T + i), vr(T + i), vr(T + 8)))
        for i in range(4): E("v_mul_f32 %s, %s, %s" % (vr(T + i), vr(T + i), vr(g + r0 + i)))
        for i in range(4): E("v_exp_f32 %s, %s" % (vr(T + i), vr(T + i)))
        for i in range(4): E("v_mul_f32 %s, %s, %s" % (vr(T + 4 + i), vr(g + r0 + i), vr(u + r0 + i)))
        for i in range(4): E("v_add_f32 %s, 1.0, %s" % (vr(T + i), vr(T + i)))
        for i in range(4): E("v_rcp_f32 %s, %s" % (vr(T + i), vr(T + i)))
        E("s_nop 0")
        for i in range(4): E("v_mul_f32 %s, %s, %s" % (vr(T + i), vr(T + i), vr(T + 4 + i)))
        for i in range(2): E("v_cvt_pk_bf16_f32 %s, %s, %s" % (vr(g + r0 // 2 + i), vr(T + 2 * i), vr(T + 2 * i + 1)))
    E("buffer_store_dwordx4 %s, %s, %s, s%d offen" % (vr(g, 4), vr(vT + 9), sr(S_WS, 4), 73 + t))
    E("buffer_store_dwordx4 %s, %s, %s, s%d offen offset:1024" % (vr(g + 4, 4), vr(vT + 9), sr(S_WS, 4), 73 + t))
def gelu_setup():
    c0 = -2.0 * math.log2(math.e) * math.sqrt(2.0 / math.pi)
    E("s_mov_b32 s72, %s" % f2u(c0 * 0.044715)); E("v_mov_b32 %s, %s" % (vr(vT + 8), f2u(c0)))
    E("v_lshlrev_b32 %s, 4, %s" % (vr(vT + 9), vr(vL)))
    E("s_lshl_b32 s75, s%d, 2" % sRT); E("s_add_u32 s73, s75, s%d" % sTA); E("s_xor_b32 s74, s73, 1")
    E("s_mul_i32 s73, s73, %d" % (NKS * 1024)); E("s_mul_i32 s74, s74, %d" % (NKS * 1024))
    E("s_lshl_b32 s75, s%d, 13" % sCG); E("s_lshr_b32 s76, s%d, 1" % sW); E("s_lshl_b32 s76, s76, 11")
    E("s_add_u32 s75, s75, s76"); E("s_add_u32 s76, s73, %d" % (112 * 1024))
    E("s_add_u32 s73, s73, s75"); E("s_add_u32 s74, s74, s75")
    E("s_lshl_b32 s75, s%d, 12" % sCG); E("s_add_u32 s76, s76, s75")
def dump_stamps(base):
    if OPT["STAMP"]:
        E("s_lshl_b32 s92, s2, 3"); E("s_add_u32 s92, s92, s%d" % sW); E("s_lshl_b32 s92, s92, 8"); E("s_add_u32 s92, s92, %d" % base)
        E("s_mov_b32 s%d, %d" % (S_WS + 2, 1 << 26)); E("v_lshlrev_b32 v254, 2, v%d" % vL)
        E("buffer_store_dword v255, v254, %s, s92 offen" % sr(S_WS, 4))

def k1():
    L("k1_kernel")
    E("s_cmp_ge_u32 s2, 256"); E("s_cbranch_scc1 K1_END")
    load_args()
    E("v_lshrrev_b32 v2, 6, v0"); E("v_and_b32 v%d, 63, v0" % vL); E("v_readfirstlane_b32 s%d, v2" % sW)
    if OPT["STAMP"]: E("v_mov_b32 v255, 0")
    E("s_waitcnt lgkmcnt(0)")
    stamp(0)
    srd(S_X, P_X, XN); srd(S_WS, P_WS, WS_SZ)
    E("s_cmp_ge_u32 s2, 224"); E("s_cbranch_scc1 K1_PREP")
    E("s_and_b32 s71, s2, 7"); E("s_lshr_b32 s72, s2, 3")
    if OPT["MAP1"] == "4x7":
        E("s_lshr_b32 s73, s71, 1"); E("s_lshl_b32 s73, s73, 2"); E("s_and_b32 s74, s72, 3"); E("s_add_u32 s%d, s73, s74" % sRT)
        E("s_and_b32 s73, s71, 1"); E("s_mul_i32 s73, s73, 7"); E("s_lshr_b32 s74, s72, 2"); E("s_add_u32 s%d, s73, s74" % sCG)
    else:
        E("s_lshl_b32 s73, s71, 1"); E("s_and_b32 s74, s72, 1"); E("s_add_u32 s%d, s73, s74" % sRT); E("s_lshr_b32 s%d, s72, 1" % sCG)
    E("s_cmp_lt_u32 s%d, 4" % sW)
    E("s_cselect_b32 s%d, s%d, s%d" % (S_B, P_BRE, P_BIM)); E("s_cselect_b32 s%d, s%d, s%d" % (S_B + 1, P_BRE + 1, P_BIM + 1))
    E("s_cselect_b32 s%d, s%d, s%d" % (S_W, P_WG, P_WU)); E("s_cselect_b32 s%d, s%d, s%d" % (S_W + 1, P_WG + 1, P_WU + 1))
    E("s_and_b32 s%d, s%d, 0xffff" % (S_B + 1, S_B + 1)); E("s_mov_b32 s%d, %d" % (S_B + 2, BN)); E("s_mov_b32 s%d, 0x20000" % (S_B + 3))
    E("s_and_b32 s%d, s%d, 0xffff" % (S_W + 1, S_W + 1)); E("s_mov_b32 s%d, %d" % (S_W + 2, WN)); E("s_mov_b32 s%d, 0x20000" % (S_W + 3))
    E("s_lshl_b32 s%d, s%d, 11" % (sM1, sW)); E("s_lshl_b32 s%d, s%d, 10" % (sM2, sW))
    E("s_and_b32 s71, s%d, 1" % sW); E("s_lshl_b32 s71, s71, 1"); E("s_bfe_u32 s72, s%d, 0x10001" % sW); E("s_add_u32 s%d, s71, s72" % sTA)
    T = vT
    C("DMA source offsets")
    E("s_movk_i32 s77, 896")
    for m, dst in ((0, vXD0), (1, vXD1)):
        E("v_lshrrev_b32 %s, 3, %s" % (vr(T), vr(vL)))
        E("s_lshl_b32 s71, s%d, 4" % sW); E("s_add_u32 s71, s71, %d" % (8 * m)); E("v_add_u32 %s, s71, %s" % (vr(T), vr(T)))
        E("v_and_b32 %s, 31, %s" % (vr(T + 1), vr(T)))
        perm(T + 2, T + 1, T + 3)
        E("v_and_b32 %s, 96, %s" % (vr(T), vr(T))); E("v_add_u32 %s, %s, %s" % (vr(T), vr(T), vr(T + 2)))
        E("s_lshl_b32 s71, s%d, 7" % sRT); E("v_add_u32 %s, s71, %s" % (vr(T), vr(T)))
        E("v_mul_lo_u32 %s, %s, s77" % (vr(T), vr(T)))
        E("v_bfe_u32 %s, %s, 1, 3" % (vr(T + 1), vr(T + 1))); E("v_and_b32 %s, 7, %s" % (vr(T + 2), vr(vL)))
        E("v_xor_b32 %s, %s, %s" % (vr(T + 1), vr(T + 1), vr(T + 2))); E("v_lshl_add_u32 %s, %s, 4, %s" % (vr(dst), vr(T + 1), vr(T)))
    E("v_lshrrev_b32 %s, 3, %s" % (vr(T), vr(vL))); E("s_and_b32 s72, s%d, 3" % sW); E("s_lshl_b32 s71, s72, 3")
    E("v_add_u32 %s, s71, %s" % (vr(T), vr(T))); E("v_bfe_u32 %s, %s, 1, 3" % (vr(T + 1), vr(T)))
    E("s_lshl_b32 s71, s%d, 5" % sCG); E("v_add_u32 %s, s71, %s" % (vr(T), vr(T))); E("v_mul_lo_u32 %s, %s, s77" % (vr(T), vr(T)))
    E("v_xor_b32 %s, %s, %s" % (vr(T + 1), vr(T + 1), vr(T + 2))); E("v_lshl_add_u32 %s, %s, 4, %s" % (vr(vBD), vr(T + 1), vr(T)))
    E("v_lshrrev_b32 %s, 4, %s" % (vr(T), vr(vL))); E("v_and_b32 %s, 15, %s" % (vr(T + 1), vr(vL)))
    E("v_lshlrev_b32 %s, 2, %s" % (vr(T + 2), vr(T))); E("v_xor_b32 %s, %s, %s" % (vr(T + 1), vr(T + 1), vr(T + 2)))
    E("v_mul_u32_u24 %s, 3584, %s" % (vr(T), vr(T))); E("v_lshl_add_u32 %s, %s, 4, %s" % (vr(T), vr(T + 1), vr(T)))
    E("s_mul_i32 s71, s72, %d" % (8 * 3584)); E("s_lshl_b32 s73, s%d, 8" % sCG); E("s_add_u32 s71, s71, s73")
    E("v_add_u32 %s, s71, %s" % (vr(vWD), vr(T)))
    C("SSM parameter loads (p = cg*32 + (l&31))")
    E("v_and_b32 %s, 31, %s" % (vr(T), vr(vL))); E("s_lshl_b32 s71, s%d, 5" % sCG)
    E("v_add_lshl_u32 %s, %s, s71, 1" % (vr(T + 10), vr(T)))
    for p, d in ((P_LRE, T + 11), (P_LIM, T + 12), (P_LDT, T + 13)):
        E("global_load_ushort %s, %s, %s" % (vr(d), vr(T + 10), sr(p, 2)))
    for j in range(4): dma_group(j)
    C("LDS fragment read addresses")
    E("v_lshrrev_b32 %s, 5, %s" % (vr(T + 1), vr(vL))); E("v_bfe_u32 %s, %s, 1, 3" % (vr(T + 2), vr(T)))
    E("s_lshl_b32 s71, s%d, 12" % sTA); E("s_xor_b32 s72, s71, 4096")
    for ks in range(4):
        E("v_add_u32 %s, %d, %s" % (vr(T + 3), 2 * ks, vr(T + 1))); E("v_xor_b32 %s, %s, %s" % (vr(T + 3), vr(T + 3), vr(T + 2)))
        E("v_lshlrev_b32 %s, 4, %s" % (vr(T + 3), vr(T + 3))); E("v_lshl_add_u32 %s, %s, 7, %s" % (vr(T + 3), vr(T), vr(T + 3)))
        E("v_add_u32 %s, s71, %s" % (vr(vXA + ks), vr(T + 3))); E("v_add_u32 %s, s72, %s" % (vr(vXB + ks), vr(T + 3)))
        E("v_add_u32 %s, 16384, %s" % (vr(vBA + ks), vr(T + 3)))
    E("v_bfe_u32 %s, %s, 2, 2" % (vr(T + 2), vr(vL)))
    E("v_lshl_add_u32 %s, %s, 3, %s" % (vr(T + 3), vr(T + 1), vr(T + 2)))
    E("v_lshlrev_b32 %s, 8, %s" % (vr(T + 3), vr(T + 3))); E("s_lshr_b32 s71, s%d, 1" % sW)
    E("v_xor_b32 %s, s71, %s" % (vr(T + 2), vr(T + 2))); E("v_lshl_add_u32 %s, %s, 6, %s" % (vr(T + 3), vr(T + 2), vr(T + 3)))
    E("v_bfe_u32 %s, %s, 4, 1" % (vr(T + 2), vr(vL))); E("v_lshl_add_u32 %s, %s, 5, %s" % (vr(T + 3), vr(T + 2), vr(T + 3)))
    E("v_and_b32 %s, 3, %s" % (vr(T + 2), vr(vL))); E("v_lshl_add_u32 %s, %s, 3, %s" % (vr(T + 3), vr(T + 2), vr(T + 3)))
    E("v_add_u32 %s, %d, %s" % (vr(vWA0), WS0, vr(T + 3))); E("v_add_u32 %s, %d, %s" % (vr(vWA1), WS0 + 49152, vr(T + 3)))
    E("s_cmp_ge_u32 s%d, 4" % sW); E("s_cbranch_scc1 K1_PLAIN")
    E("s_waitcnt vmcnt(14)")
    a, b, d = T + 11, T + 12, T + 13
    for r in (a, b, d): E("v_lshlrev_b32 %s, 16, %s" % (vr(r), vr(r)))
    E("v_mul_f32 %s, %s, %s" % (vr(d), f2u(math.log2(math.e)), vr(d))); E("v_exp_f32 %s, %s" % (vr(d), vr(d))); E("s_nop 0")
    E("v_cvt_pk_bf16_f32 %s, %s, %s" % (vr(d), vr(d), vr(d))); E("v_lshlrev_b32 %s, 16, %s" % (vr(d), vr(d)))
    E("v_mul_f32 %s, %s, %s" % (vr(T), vr(d), vr(a))); E("v_mul_f32 %s, %s, %s" % (vr(T + 1), vr(d), vr(b)))
    E("v_mul_f32 %s, %s, %s" % (vr(T), f2u(math.log2(math.e)), vr(T))); E("v_mul_f32 %s, %s, %s" % (vr(T + 1), f2u(0.5 / math.pi), vr(T + 1)))
    E("v_rndne_f32 %s, %s" % (vr(T + 2), vr(T + 1))); E("v_sub_f32 %s, %s, %s" % (vr(T + 1), vr(T + 1), vr(T + 2)))
    E("v_exp_f32 %s, %s" % (vr(T), vr(T))); E("v_cos_f32 %s, %s" % (vr(T + 2), vr(T + 1))); E("v_sin_f32 %s, %s" % (vr(T + 3), vr(T + 1))); E("s_nop 0")
    E("v_mul_f32 %s, %s, %s" % (vr(vLR), vr(T), vr(T + 2))); E("v_mul_f32 %s, %s, %s" % (vr(vLI), vr(T), vr(T + 3)))
    C("coef = 2*(lam-1)/Lam")
    E("v_add_f32 %s, -1.0, %s" % (vr(T), vr(vLR))); E("v_mul_f32 %s, %s, %s" % (vr(T + 1), vr(a), vr(a)))
    E("v_fma_f32 %s, %s, %s, %s" % (vr(T + 1), vr(b), vr(b), vr(T + 1))); E("v_rcp_f32 %s, %s" % (vr(T + 1), vr(T + 1)))
    E("v_mul_f32 %s, %s, %s" % (vr(vCR), vr(T), vr(a))); E("v_mul_f32 %s, %s, %s" % (vr(vCI), vr(vLI), vr(a)))
    E("v_fma_f32 %s, %s, %s, %s" % (vr(vCR), vr(vLI), vr(b), vr(vCR))); E("v_fma_f32 %s, -%s, %s, %s" % (vr(vCI), vr(T), vr(b), vr(vCI)))
    E("v_add_f32 %s, %s, %s" % (vr(T + 1), vr(T + 1), vr(T + 1)))
    E("v_mul_f32 %s, %s, %s" % (vr(vCR), vr(vCR), vr(T + 1))); E("v_mul_f32 %s, %s, %s" % (vr(vCI), vr(vCI), vr(T + 1)))
    cmul(T, T + 1, vLR, vLI, vLR, vLI); cmul(T + 2, T + 3, T, T + 1, T, T + 1); cmul(T, T + 1, T + 2, T + 3, T + 2, T + 3)
    cmul(vL16R, vL16I, T, T + 1, T, T + 1)
    cmul(T, T + 1, vL16R, vL16I, vL16R, vL16I); cmul(T + 2, T + 3, T, T + 1, T, T + 1); cmul(vL128R, vL128I, T + 2, T + 3, T + 2, T + 3)
    stamp(1)
    main_loop(True)
    stamp(2)
    gelu_setup(); srd(S_DBG, P_DBG, 256)
    E("s_nop 7")
    C("pass 1: end state of this lane's 16 steps")
    H = [T, T + 2]
    cfma(H[1], H[1] + 1, vLR, vLI, ASR, ASI, ASR + 1, ASI + 1)
    for j in range(2, 16):
        cfma(H[j & 1], H[j & 1] + 1, vLR, vLI, H[(j - 1) & 1], H[(j - 1) & 1] + 1, ASR + j, ASI + j)
    E("v_and_b32 %s, 31, %s" % (vr(T + 4), vr(vL))); E("v_lshlrev_b32 %s, 3, %s" % (vr(T + 4), vr(T + 4)))
    E("s_lshl_b32 s71, s%d, 9" % sTA); E("s_add_u32 s71, s71, %d" % EXO)
    E("v_lshl_add_u32 %s, %s, 3, s71" % (vr(T + 5), vr(vL)))
    E("ds_write_b64 %s, %s" % (vr(T + 5), vr(H[1], 2)))
    E("v_add_u32 %s, %d, %s" % (vr(T + 5), EXO, vr(T + 4)))
    E("s_waitcnt lgkmcnt(0)"); E("s_barrier")
    for s in range(8): E("ds_read_b64 %s, %s offset:%d" % (vr(vEE + 2 * s, 2), vr(T + 5), s * 256))
    E("s_lshl_b32 s78, s%d, 12" % sCG); E("s_add_u32 s78, s78, %d" % E0)
    E("s_lshl_b32 s79, s%d, 4" % sCG)
    E("v_mov_b32 %s, %s" % (vr(T + 10), vr(T + 4)))
    E("s_cmp_lg_u32 s%d, 0" % sW); E("s_cbranch_scc1 K1_NOPUB")
    E("s_waitcnt lgkmcnt(0)")
    cfma(H[1], H[1] + 1, vL16R, vL16I, vEE, vEE + 1, vEE + 2, vEE + 3)
    for s in range(2, 8):
        cfma(H[s & 1], H[s & 1] + 1, vL16R, vL16I, H[(s - 1) & 1], H[(s - 1) & 1] + 1, vEE + 2 * s, vEE + 2 * s + 1)
    E("s_lshl_b32 s71, s%d, 8" % sRT); E("s_add_u32 s71, s71, s78")
    E("buffer_store_dwordx2 %s, %s, %s, s71 offen sc0 sc1" % (vr(H[1], 2), vr(T + 10), sr(S_WS, 4)))
    E("s_add_u32 s71, s79, s%d" % sRT); E("v_mov_b32 %s, 0" % vr(T + 6)); E("v_mov_b32 %s, 1" % vr(T + 7))
    E("s_waitcnt vmcnt(0)")
    E("buffer_store_byte %s, %s, %s, s71 offen sc0 sc1" % (vr(T + 7), vr(T + 6), sr(S_DBG, 4)))
    L("K1_NOPUB")
    stamp(3)
    gelu_store(0); gelu_store(1)
    stamp(4)
    C("look-back")
    E("v_and_b32 %s, 15, %s" % (vr(T + 6), vr(vL))); E("s_bfm_b32 s80, s%d, 0" % sRT); E("s_mov_b32 s81, 0")
    L("K1_POLL")
    E("buffer_load_ubyte %s, %s, %s, s79 offen sc0 sc1" % (vr(T + 7), vr(T + 6), sr(S_DBG, 4)))
    E("s_waitcnt vmcnt(0)"); E("v_cmp_ne_u32 vcc, 0, %s" % vr(T + 7)); E("s_nop 4")
    E("s_and_b32 s71, vcc_lo, s80"); E("s_cmp_eq_u32 s71, s80"); E("s_cbranch_scc1 K1_GOT")
    E("s_add_u32 s81, s81, 1"); E("s_cmp_gt_u32 s81, 0x40000"); E("s_cbranch_scc1 K1_GOT")
    E("s_sleep 2"); E("s_branch K1_POLL")
    L("K1_GOT")
    for c in range(15): E("buffer_load_dwordx2 %s, %s, %s, s78 offen offset:%d sc0 sc1" % (vr(vEC + 2 * c, 2), vr(T + 10), sr(S_WS, 4), c * 256))
    E("v_mov_b32 %s, 0" % vr(T)); E("v_mov_b32 %s, 0" % vr(T + 1))
    E("v_lshrrev_b32 %s, 5, %s" % (vr(T + 6), vr(vL))); E("s_lshl_b32 s71, s%d, 1" % sTA); E("v_add_u32 %s, s71, %s" % (vr(T + 6), vr(T + 6)))
    E("s_waitcnt vmcnt(0) lgkmcnt(0)")
    for c in range(15):
        E("s_cmp_le_u32 s%d, %d" % (sRT, c)); E("s_cbranch_scc1 K1_LBD")
        cfma(vEC + 2 * c, vEC + 2 * c + 1, vL128R, vL128I, T, T + 1, vEC + 2 * c, vEC + 2 * c + 1)
        E("v_mov_b32 %s, %s" % (vr(T), vr(vEC + 2 * c))); E("v_mov_b32 %s, %s" % (vr(T + 1), vr(vEC + 2 * c + 1)))
    L("K1_LBD")
    for s in range(7):
        E("v_cmp_lt_u32 vcc, %d, %s" % (s, vr(T + 6)))
        cfma(T + 2, T + 3, vL16R, vL16I, T, T + 1, vEE + 2 * s, vEE + 2 * s + 1)
        E("v_cndmask_b32 %s, %s, %s, vcc" % (vr(T), vr(T), vr(T + 2))); E("v_cndmask_b32 %s, %s, %s, vcc" % (vr(T + 1), vr(T + 1), vr(T + 3)))
    C("pass 2")
    for j in range(16):
        hr, hi = (T, T + 1) if j == 0 else (ASR + j - 1, ASI + j - 1)
        cfma(ASR + j, ASI + j, vLR, vLI, hr, hi, ASR + j, ASI + j)
    OR_, OI = vEC, vEC + 8
    for j in range(0, 16, 2):
        for k in range(2):
            hr, hi = ASR + j + k, ASI + j + k
            E("v_mul_f32 %s, %s, %s" % (vr(T + k), vr(vCR), vr(hr))); E("v_mul_f32 %s, %s, %s" % (vr(T + 2 + k), vr(vCR), vr(hi)))
            E("v_fma_f32 %s, -%s, %s, %s" % (vr(T + k), vr(vCI), vr(hi), vr(T + k)))
            E("v_fma_f32 %s, -%s, %s, -%s" % (vr(T + 2 + k), vr(vCI), vr(hr), vr(T + 2 + k)))
        E("v_cvt_pk_bf16_f32 %s, %s, %s" % (vr(OR_ + j // 2), vr(T), vr(T + 1)))
        E("v_cvt_pk_bf16_f32 %s, %s, %s" % (vr(OI + j // 2), vr(T + 2), vr(T + 3)))
    C("transpose through LDS: rows k (re p, im p) of 64 B (32 t)")
    E("s_lshl_b32 s71, s%d, 12" % sW); E("s_add_u32 s71, s71, %d" % TRO)
    E("v_lshrrev_b32 %s, 5, %s" % (vr(T), vr(vL))); E("v_lshlrev_b32 %s, 5, %s" % (vr(T + 1), vr(T)))
    E("v_lshl_add_u32 %s, %s, 3, %s" % (vr(T + 1), vr(T + 10), vr(T + 1))); E("v_add_u32 %s, s71, %s" % (vr(T + 1), vr(T + 1)))
    E("ds_write_b128 %s, %s" % (vr(T + 1), vr(OR_, 4))); E("ds_write_b128 %s, %s offset:16" % (vr(T + 1), vr(OR_ + 4, 4)))
    E("ds_write_b128 %s, %s offset:2048" % (vr(T + 1), vr(OI, 4))); E("ds_write_b128 %s, %s offset:2064" % (vr(T + 1), vr(OI + 4, 4)))
    E("v_bfe_u32 %s, %s, 2, 2" % (vr(T + 2), vr(vL))); E("v_lshl_add_u32 %s, %s, 3, %s" % (vr(T + 2), vr(T), vr(T + 2)))
    E("v_lshlrev_b32 %s, 6, %s" % (vr(T + 2), vr(T + 2)))
    E("v_and_b32 %s, 1, %s" % (vr(T + 3), vr(vL))); E("v_lshl_add_u32 %s, %s, 5, %s" % (vr(T + 2), vr(T + 3), vr(T + 2)))
    E("v_bfe_u32 %s, %s, 4, 1" % (vr(T + 3), vr(vL))); E("v_lshl_add_u32 %s, %s, 4, %s" % (vr(T + 2), vr(T + 3), vr(T + 2)))
    E("v_bfe_u32 %s, %s, 1, 1" % (vr(T + 3), vr(vL))); E("v_lshl_add_u32 %s, %s, 3, %s" % (vr(T + 2), vr(T + 3), vr(T + 2)))
    E("v_add_u32 %s, s71, %s" % (vr(T + 2), vr(T + 2)))
    E("s_waitcnt lgkmcnt(0)")
    for q in range(4):
        E("ds_read_b64_tr_b16 %s, %s offset:%d" % (vr(ASR + 4 * q, 2), vr(T + 2), q * 1024))
        E("ds_read_b64_tr_b16 %s, %s offset:%d" % (vr(ASR + 4 * q + 2, 2), vr(T + 2), q * 1024 + 256))
    for q in range(4):
        E("s_waitcnt lgkmcnt(%d)" % (6 - 2 * q))
        E("buffer_store_dwordx4 %s, %s, %s, s76 offen offset:%d" % (vr(ASR + 4 * q, 4), vr(vT + 9), sr(S_WS, 4), q * 1024))
    stamp(5); dump_stamps(1 << 25)
    E("s_endpgm")
    L("K1_PLAIN")
    stamp(1)
    main_loop(False)
    stamp(2)
    gelu_setup()
    E("s_barrier")
    stamp(3)
    gelu_store(0); gelu_store(1)
    stamp(4); dump_stamps(1 << 25)
    E("s_endpgm")
    L("K1_PREP")
    E("s_sub_u32 s65, s2, 224"); E("s_lshl_b32 s65, s65, 3"); E("s_add_u32 s65, s65, s%d" % sW)
    srd(S_T, P_GW, 896)
    E("v_lshrrev_b32 v2, 3, v1"); E("s_lshl_b32 s71, s65, 3"); E("v_add_u32 v2, s71, v2")
    E("v_and_b32 v3, 7, v1"); E("v_lshlrev_b32 v3, 4, v3"); E("v_mul_u32_u24 v4, 896, v2"); E("v_add_u32 v4, v4, v3")
    for i in range(7):
        E("buffer_load_dwordx4 %s, v4, %s, 0 offen offset:%d" % (vr(8 + 4 * i, 4), sr(S_X, 4), i * 128))
        E("buffer_load_dwordx4 %s, v3, %s, 0 offen offset:%d" % (vr(36 + 4 * i, 4), sr(S_T, 4), i * 128))
    E("v_lshlrev_b32 v5, 4, v1")
    E("s_cmp_ge_u32 s65, 224"); E("s_cbranch_scc1 K1_PG")
    E("s_cmp_ge_u32 s65, 112"); E("s_cbranch_scc1 K1_PC")
    C("W_down k-step s65 -> fragments")
    srd(S_W, P_WD, WN)
    E("s_mul_i32 s71, s65, 14336"); E("s_mul_i32 s72, s%d, 14336" % sW)
    for i in range(14):
        E("s_add_u32 m0, s72, %d" % (i * 1024)); E("s_add_u32 s73, s71, %d" % (i * 1024))
        E("buffer_load_dwordx4 v5, %s, s73 offen lds" % sr(S_W, 4))
    E("v_lshrrev_b32 v6, 5, v1"); E("v_bfe_u32 v7, v1, 2, 2"); E("v_lshl_add_u32 v6, v6, 2, v7"); E("v_mul_u32_u24 v6, 896, v6")
    E("v_bfe_u32 v7, v1, 4, 1"); E("v_lshl_add_u32 v6, v7, 5, v6"); E("v_and_b32 v7, 3, v1"); E("v_lshl_add_u32 v6, v7, 3, v6")
    E("v_add_u32 v6, s72, v6"); E("s_lshl_b32 s71, s65, 10"); E("s_add_u32 s71, s71, %d" % WB0)
    E("s_waitcnt vmcnt(0)")
    for nb in range(14):
        E("ds_read_b64_tr_b16 %s, v6 offset:%d" % (vr(64 + 4 * nb, 2), nb * 64))
        E("ds_read_b64_tr_b16 %s, v6 offset:%d" % (vr(66 + 4 * nb, 2), nb * 64 + 8 * 896))
    E("s_waitcnt lgkmcnt(0)")
    for nb in range(14):
        E("buffer_store_dwordx4 %s, v5, %s, s71 offen" % (vr(64 + 4 * nb, 4), sr(S_WS, 4))); E("s_add_u32 s71, s71, %d" % (NKS * 1024))
    E("s_branch K1_PG")
    L("K1_PC")
    E("s_sub_u32 s66, s65, 112"); E("s_lshr_b32 s67, s66, 3"); E("s_bfe_u32 s68, s66, 0x10002"); E("s_and_b32 s69, s66, 3")
    E("s_cmp_eq_u32 s68, 0")
    E("s_cselect_b32 s%d, s%d, s%d" % (S_B, P_CRE, P_CIM)); E("s_cselect_b32 s%d, s%d, s%d" % (S_B + 1, P_CRE + 1, P_CIM + 1))
    E("s_and_b32 s%d, s%d, 0xffff" % (S_B + 1, S_B + 1)); E("s_mov_b32 s%d, %d" % (S_B + 2, BN)); E("s_mov_b32 s%d, 0x20000" % (S_B + 3))
    E("v_and_b32 v6, 31, v1"); E("s_lshl_b32 s71, s67, 5"); E("v_add_u32 v6, s71, v6"); E("v_mul_u32_u24 v6, 896, v6")
    E("v_lshrrev_b32 v7, 5, v1"); E("v_lshl_add_u32 v6, v7, 4, v6")
    E("s_mul_i32 s69, s69, 7"); E("s_lshl_b32 s71, s69, 5")
    for i in range(7): E("buffer_load_dwordx4 %s, v6, %s, s71 offen offset:%d" % (vr(64 + 4 * i, 4), sr(S_B, 4), i * 32))
    E("s_mul_i32 s72, s67, %d" % NKS); E("s_lshl_b32 s68, s68, 1"); E("s_add_u32 s72, s72, s68"); E("s_add_u32 s72, s72, %d" % (112 + WB0 // 1024))
    E("s_waitcnt vmcnt(0)")
    for i in range(7):
        E("s_add_u32 s73, s69, %d" % i); E("s_lshr_b32 s74, s73, 1"); E("s_lshl_b32 s74, s74, 2"); E("s_and_b32 s73, s73, 1")
        E("s_add_u32 s73, s73, s74"); E("s_add_u32 s73, s73, s72"); E("s_lshl_b32 s73, s73, 10")
        E("buffer_store_dwordx4 %s, v5, %s, s73 offen" % (vr(64 + 4 * i, 4), sr(S_WS, 4)))
    L("K1_PG")
    E("s_waitcnt vmcnt(0)"); E("v_mov_b32 v6, 0"); E("v_mov_b32 v7, 0"); E("s_mov_b32 s71, 0xffff0000")
    for i in range(28):
        x, w = 8 + i, 36 + i
        E("v_lshlrev_b32 v124, 16, v%d" % x); E("v_and_b32 v125, s71, v%d" % x); E("v_lshlrev_b32 v126, 16, v%d" % w); E("v_and_b32 v127, s71, v%d" % w)
        E("v_mul_f32 v124, v124, v126"); E("v_mul_f32 v125, v125, v127"); E("v_cvt_pk_bf16_f32 v124, v124, v125")
        E("v_lshlrev_b32 v125, 16, v124"); E("v_and_b32 v124, s71, v124"); E("v_add_f32 v6, v6, v125"); E("v_add_f32 v7, v7, v124")
    E("v_add_f32 v6, v6, v7")
    for o in ("0x041F", "0x081F", "0x101F"):
        E("ds_swizzle_b32 v7, v6 offset:%s" % o); E("s_waitcnt lgkmcnt(0)"); E("v_add_f32 v6, v6, v7")
    E("v_cvt_pk_bf16_f32 v6, v6, v6"); E("v_lshlrev_b32 v6, 16, v6"); E("v_mul_f32 v6, %s, v6" % f2u(-math.log2(math.e)))
    E("v_exp_f32 v6, v6"); E("s_nop 0"); E("v_add_f32 v6, 1.0, v6"); E("v_rcp_f32 v6, v6"); E("s_nop 0")
    E("v_cvt_pk_bf16_f32 v6, v6, v6"); E("v_lshlrev_b32 v6, 16, v6"); E("v_lshlrev_b32 v2, 2, v2"); E("s_mov_b32 s71, %d" % G0)
    E("buffer_store_dword v6, v2, %s, s71 offen" % sr(S_WS, 4))
    stamp(5); dump_stamps(1 << 25)
    L("K1_END")
    E("s_endpgm")

def k2():
    D = OPT["D2"]
    L("k2_kernel")
    E("s_cmp_ge_u32 s2, 224"); E("s_cbranch_scc1 K2_END")
    load_args()
    E("v_lshrrev_b32 v2, 6, v0"); E("v_and_b32 v1, 63, v0"); E("v_readfirstlane_b32 s64, v2")
    if OPT["STAMP"]: E("v_mov_b32 v255, 0")
    E("s_and_b32 s71, s2, 7"); E("s_lshr_b32 s72, s2, 3"); E("s_lshl_b32 s71, s71, 2"); E("s_and_b32 s73, s72, 3")
    E("s_add_u32 s65, s71, s73"); E("s_lshr_b32 s66, s72, 2")
    E("s_mul_i32 s67, s65, %d" % (2 * NKS * 1024)); E("s_add_u32 s68, s67, %d" % (NKS * 1024))
    E("s_mul_i32 s69, s66, %d" % (2 * NKS * 1024)); E("s_add_u32 s69, s69, %d" % WB0); E("s_add_u32 s70, s69, %d" % (NKS * 1024))
    E("s_mul_i32 s71, s64, %d" % (28 * 1024)); E("s_mul_i32 s72, s64, %d" % (14 * 1024)); E("s_add_u32 s72, s72, %d" % (112 * 1024))
    E("v_lshl_add_u32 v2, v1, 4, s71"); E("v_lshl_add_u32 v3, v1, 4, s72")
    E("s_waitcnt lgkmcnt(0)")
    stamp(0)
    srd(S_WS, P_WS, WS_SZ)
    AF, AS = 16, 80
    def loads(i):
        if i >= 42: return
        va = 2 if i < 28 else 3; ii = i if i < 28 else i - 28; R = (i % D) * 16
        for k, so in enumerate((69, 67, 68, 70)):
            E("buffer_load_dwordx4 %s, v%d, %s, s%d offen offset:%d" % (ar(R + 4 * k, 4), va, sr(S_WS, 4), so, (ii % 4) * 1024))
        if ii % 4 == 3: E("v_add_u32 v%d, 4096, v%d" % (va, va))
    srd(S_X, P_X, XN); srd(S_T, P_D, 896); srd(S_B, P_OUT, 2048 * 448 * 4)
    E("v_and_b32 v4, 31, v1"); perm(5, 4, 6); E("s_lshl_b32 s73, s65, 6"); E("v_add_lshl_u32 v5, v5, s73, 2"); E("s_mov_b32 s74, %d" % G0)
    for i in range(min(D, 2)): loads(i)
    E("buffer_load_dword v8, v5, %s, s74 offen" % sr(S_WS, 4)); E("buffer_load_dword v9, v5, %s, s74 offen offset:128" % sr(S_WS, 4))
    E("v_lshrrev_b32 v4, 4, v1"); E("v_and_b32 v6, 15, v1"); E("s_lshl_b32 s75, s66, 7")
    E("v_lshl_add_u32 v7, v6, 3, s75")
    E("buffer_load_dwordx2 v[10:11], v7, %s, 0 offen" % sr(S_T, 4))
    E("s_and_b32 s75, s64, 1"); E("s_lshl_b32 s75, s75, 3"); E("s_lshr_b32 s76, s64, 1"); E("s_lshl_b32 s76, s76, 5")
    E("s_add_u32 s75, s75, s76"); E("s_add_u32 s75, s75, s73"); E("v_add_u32 v12, s75, v4")
    E("v_lshlrev_b32 v13, 2, v12"); E("v_mul_u32_u24 v12, 896, v12"); E("v_add_u32 v12, v12, v7")
    TO = [0, 16, 4, 20]
    for i in range(4):
        E("s_mov_b32 s77, %d" % (TO[i] * 896))
        E("buffer_load_dwordx2 %s, v12, %s, s77 offen" % (vr(144 + 2 * i, 2), sr(S_X, 4)))
        E("buffer_load_dword v%d, v13, %s, s74 offen offset:%d" % (152 + i, sr(S_WS, 4), TO[i] * 4))
    for i in range(2, D): loads(i)
    stamp(1)
    for i in range(42):
        nout = 4 * (min(i + D, 42) - i - 1)
        if i < 2: nout = min(63, nout + 11)
        E("s_waitcnt vmcnt(%d)" % nout)
        R = (i % D) * 16; A = AF if i < 28 else AS; first = i in (0, 28)
        for k, (a, b) in enumerate(((0, 1), (0, 2), (3, 1), (3, 2))):
            E("v_mfma_f32_32x32x16_bf16 %s, %s, %s, %s" % (vr(A + 16 * k, 16), ar(R + 4 * a, 4), ar(R + 4 * b, 4), "0" if first else vr(A + 16 * k, 16)))
        loads(i + D)
    stamp(2)
    E("v_sub_f32 v14, 1.0, v8"); E("v_sub_f32 v15, 1.0, v9"); E("v_cvt_pk_bf16_f32 v14, v14, v15")
    E("v_and_b32 v15, 0xffff0000, v14"); E("v_lshlrev_b32 v14, 16, v14")
    E("v_and_b32 v4, 31, v1"); E("v_lshrrev_b32 v5, 5, v1"); E("v_and_b32 v6, 7, v1"); E("v_xor_b32 v5, v5, v6")
    E("s_lshl_b32 s75, s64, 14"); E("v_lshl_add_u32 v4, v4, 8, s75")
    for q in range(4):
        E("v_xor_b32 v6, %d, v5" % (2 * q)); E("v_lshl_add_u32 v%d, v6, 4, v4" % (156 + q))
    E("s_nop 4")
    for k in range(4):
        nb, tb = k >> 1, k & 1
        for r in range(16): E("v_mul_f32 v%d, v%d, v%d" % (AF + 16 * k + r, 14 + tb, AF + 16 * k + r))
        for r in range(16): E("v_fmac_f32 v%d, v%d, v%d" % (AF + 16 * k + r, 8 + tb, AS + 16 * k + r))
        for q in range(4): E("ds_write_b128 v%d, %s offset:%d" % (156 + q, vr(AF + 16 * k + 4 * q, 4), tb * 8192 + nb * 128))
    E("v_lshrrev_b32 v4, 4, v1"); E("s_lshl_b32 s75, s64, 4"); E("v_add_u32 v4, s75, v4"); E("v_and_b32 v6, 15, v1")
    for i in range(2):
        E("v_add_u32 v5, %d, v4" % (4 * i)); E("v_and_b32 v7, 7, v5"); E("v_xor_b32 v7, v7, v6"); E("v_lshlrev_b32 v7, 4, v7")
        E("v_lshl_add_u32 v%d, v5, 8, v7" % (156 + 4 + i))
    E("v_lshlrev_b32 v12, 1, v12")
    E("v_lshlrev_b32 v4, 16, v10"); E("v_and_b32 v5, 0xffff0000, v10"); E("v_lshlrev_b32 v6, 16, v11"); E("v_and_b32 v7, 0xffff0000, v11")
    E("s_waitcnt lgkmcnt(0)"); E("s_barrier")
    for i in range(4):
        for sw in range(4): E("ds_read_b128 %s, v%d offset:%d" % (vr(16 + 16 * i + 4 * sw, 4), 160 + (i & 1), sw * 16384 + (i >> 1) * 2048))
    for i in range(4):
        x0, x1, S = 144 + 2 * i, 145 + 2 * i, 80 + 4 * i
        E("v_lshlrev_b32 v%d, 16, v%d" % (S, x0)); E("v_and_b32 v%d, 0xffff0000, v%d" % (S + 1, x0))
        E("v_lshlrev_b32 v%d, 16, v%d" % (S + 2, x1)); E("v_and_b32 v%d, 0xffff0000, v%d" % (S + 3, x1))
        for r in range(4): E("v_mul_f32 v%d, v%d, v%d" % (S + r, S + r, 4 + r))
        E("v_cvt_pk_bf16_f32 v%d, v%d, v%d" % (x0, S, S + 1)); E("v_cvt_pk_bf16_f32 v%d, v%d, v%d" % (x1, S + 2, S + 3))
        E("v_lshlrev_b32 v%d, 16, v%d" % (S, x0)); E("v_and_b32 v%d, 0xffff0000, v%d" % (S + 1, x0))
        E("v_lshlrev_b32 v%d, 16, v%d" % (S + 2, x1)); E("v_and_b32 v%d, 0xffff0000, v%d" % (S + 3, x1))
    for i in range(4):
        B, S = 16 + 16 * i, 80 + 4 * i
        E("s_waitcnt lgkmcnt(%d)" % (12 - 4 * i))
        for r in range(4): E("v_add_f32 v%d, v%d, v%d" % (B + r, B + r, B + 4 + r))
        for r in range(4): E("v_add_f32 v%d, v%d, v%d" % (B + 8 + r, B + 8 + r, B + 12 + r))
        for r in range(4): E("v_fmac_f32 v%d, v%d, v%d" % (B + r, 152 + i, S + r))
        for r in range(4): E("v_add_f32 v%d, v%d, v%d" % (B + r, B + r, B + 8 + r))
        E("s_mov_b32 s77, %d" % (TO[i] * 1792))
        E("buffer_store_dwordx4 %s, v12, %s, s77 offen" % (vr(B, 4), sr(S_B, 4)))
    stamp(3); dump_stamps((1 << 25) + (1 << 20))
    L("K2_END")
    E("s_endpgm")

def desc(name, vg, acc):
    return [".p2align 6", ".amdhsa_kernel %s" % name, "  .amdhsa_next_free_vgpr %d" % vg, "  .amdhsa_next_free_sgpr 96",
            "  .amdhsa_accum_offset %d" % acc, "  .amdhsa_group_segment_fixed_size 0", "  .amdhsa_kernarg_size 136",
            "  .amdhsa_user_sgpr_count 2", "  .amdhsa_user_sgpr_kernarg_segment_ptr 1", "  .amdhsa_system_sgpr_workgroup_id_x 1",
            ".end_amdhsa_kernel"]
hdr = [l.rstrip("\n") for l in open("cdna_kernels/%s.s.ref" % NAME) if l.startswith(";   offset") or l.startswith("; Kernarg")]
hdr += ["; @launch kernel=k1_kernel grid=(256,1,1) block=(512,1,1) lds=163840",
        "; @launch kernel=k2_kernel grid=(224,1,1) block=(256,1,1) lds=65536",
        '.amdgcn_target "amdgcn-amd-amdhsa--gfx950"', ".text"]
body = []
for nm, fn in (("k1_kernel", k1), ("k2_kernel", k2)):
    out.clear(); fn()
    body += [".globl %s" % nm, ".p2align 8", ".type %s,@function" % nm] + list(out)
acc2 = 256 if OPT["STAMP"] else 164
tail = ['.section .rodata,"a"'] + desc("k1_kernel", 256, 256) + desc("k2_kernel", acc2 + OPT["D2"] * 16, acc2)
open(sys.argv[1], "w").write("\n".join(hdr + body + tail) + "\n")
```

```python
import sys, struct, math
NAME = "gated_mix__ssm_conv_s5__glu_gated_geglu__prompt"
OPT = dict(ROT=1, PACE=1, EARLY=1, NS=14, M16=0, TWICE=0, NOMMA=0, NODMA=0, NOLDS=0, D2=8, MAP1="4x7", STAMP=0)
for a in sys.argv[2:]:
    k, v = a.split("="); OPT[k] = int(v) if v.lstrip("-").isdigit() else v
out = []
def E(s): out.append("    " + s)
def L(s): out.append(s + ":")
def C(s): out.append("    ; " + s)
def f2u(x): return "0x%08x" % struct.unpack("<I", struct.pack("<f", x))[0]
def vr(b, n=1): return "v%d" % b if n == 1 else "v[%d:%d]" % (b, b + n - 1)
def ar(b, n=1): return "a%d" % b if n == 1 else "a[%d:%d]" % (b, b + n - 1)
def sr(b, n=1): return "s%d" % b if n == 1 else "s[%d:%d]" % (b, b + n - 1)
def srd(d, p, nbytes):
    E("s_mov_b32 s%d, s%d" % (d, p)); E("s_and_b32 s%d, s%d, 0xffff" % (d + 1, p + 1))
    E("s_mov_b32 s%d, %d" % (d + 2, nbytes)); E("s_mov_b32 s%d, 0x20000" % (d + 3))
NKS = 168
HA0 = 0; HA_SZ = 64 * NKS * 1024
WB0 = HA_SZ; WB_SZ = 14 * NKS * 1024
G0 = WB0 + WB_SZ; E0 = G0 + 8192; FL0 = E0 + 14 * 16 * 512; WS_SZ = FL0 + 4096; NLO = 157696
XN = 2048 * 448 * 2; BN = 448 * 448 * 2; WN = 448 * 1792 * 2
P_X, P_LRE, P_LIM, P_BRE, P_BIM, P_CRE, P_CIM, P_LDT = 4, 6, 8, 10, 12, 14, 16, 18
P_D, P_BX, P_WG, P_WU, P_WD, P_GW, P_OUT, P_DBG, P_WS = 20, 22, 24, 26, 28, 30, 32, 34, 36
def load_args():
    E("s_load_dwordx16 s[4:19], s[0:1], 0"); E("s_load_dwordx16 s[20:35], s[0:1], 64")
    E("s_load_dwordx2 s[36:37], s[0:1], 128")
def perm(dst, r, t1):
    E("v_and_b32 %s, 3, %s" % (vr(dst), vr(r)))
    E("v_lshrrev_b32 %s, 3, %s" % (vr(t1), vr(r)))
    E("v_lshl_add_u32 %s, %s, 2, %s" % (vr(dst), vr(t1), vr(dst)))
    E("v_bfe_u32 %s, %s, 2, 1" % (vr(t1), vr(r)))
    E("v_lshl_add_u32 %s, %s, 4, %s" % (vr(dst), vr(t1), vr(dst)))
def cmul(dr, di, ar_, ai, br, bi):
    E("v_mul_f32 %s, %s, %s" % (vr(dr), vr(ar_), vr(br))); E("v_mul_f32 %s, %s, %s" % (vr(di), vr(ar_), vr(bi)))
    E("v_fma_f32 %s, -%s, %s, %s" % (vr(dr), vr(ai), vr(bi), vr(dr))); E("v_fma_f32 %s, %s, %s, %s" % (vr(di), vr(ai), vr(br), vr(di)))
def cfma(dr, di, lr, li, hr, hi, ur, ui):
    E("v_fma_f32 %s, %s, %s, %s" % (vr(dr), vr(lr), vr(hr), vr(ur))); E("v_fma_f32 %s, %s, %s, %s" % (vr(di), vr(lr), vr(hi), vr(ui)))
    E("v_fma_f32 %s, -%s, %s, %s" % (vr(dr), vr(li), vr(hi), vr(dr))); E("v_fma_f32 %s, %s, %s, %s" % (vr(di), vr(li), vr(hr), vr(di)))
def stamp(slot):
    if OPT["STAMP"]:
        E("s_memrealtime s[90:91]"); E("s_waitcnt lgkmcnt(0)"); E("v_writelane_b32 v0, s90, %d" % slot)
        if slot in (1, 2): E("s_memtime s[90:91]"); E("s_waitcnt lgkmcnt(0)"); E("v_writelane_b32 v0, s90, %d" % (slot + 10))

S_X, S_B, S_W, S_WS, S_DBG, S_T = 40, 44, 48, 52, 56, 60
sW, sRT, sCG, sTA, sM1, sM2, sM3 = 64, 65, 66, 67, 68, 69, 70
XBS = [0, 24576, 49152]; WS0 = 73728; EXO = 155648; TRO = 131072
vL, vXD0, vXD1, vBD, vWD = 1, 2, 3, 4, 5
vXA, vXB, vBA, vWA0, vWA1 = 6, 10, 14, 18, 19
vLR, vLI, vCR, vCI, vL16R, vL16I, vL128R, vL128I = 20, 21, 22, 23, 24, 25, 26, 27
vT = 28
FR = [48, 72]
AG = [96, 112]; AU = [128, 144]; ASR, ASI = 160, 176
vEE = 48
vEC = 64
def dma_group(j):
    if j > 13 or (OPT["NODMA"] and j > 3): return
    if j % 2 == 0:
        st = j // 2; slot = XBS[st % 3]
        E("s_mov_b32 s71, %d" % (st * 128))
        E("s_add_u32 m0, s%d, %d" % (sM1, slot)); E("s_nop 0")
        E("buffer_load_dwordx4 %s, %s, s71 offen lds" % (vr(vXD0), sr(S_X, 4)))
        E("s_add_u32 m0, s%d, %d" % (sM1, slot + 1024)); E("s_nop 0")
        E("buffer_load_dwordx4 %s, %s, s71 offen lds" % (vr(vXD1), sr(S_X, 4)))
        E("s_add_u32 m0, s%d, %d" % (sM2, slot + 16384)); E("s_nop 0")
        E("buffer_load_dwordx4 %s, %s, s71 offen lds" % (vr(vBD), sr(S_B, 4)))
    for m in range(2):
        E("s_mov_b32 s71, %d" % ((32 * j + 4 * m) * 3584))
        E("s_add_u32 m0, s%d, %d" % (sM1, WS0 + (j % 5) * 16384 + m * 1024)); E("s_nop 0")
        E("buffer_load_dwordx4 %s, %s, s71 offen lds" % (vr(vWD), sr(S_W, 4)))
def gsize(j): return 0 if j > 13 else (5 if j % 2 == 0 else 2)
def frag_reads(n, ssm):
    F = FR[n & 1]; xs = XBS[(n // 4) % 3]; ks = n % 4; i = n // 2; wsl = i % 5
    wa = vWA0 if wsl < 3 else vWA1; wo = (wsl if wsl < 3 else wsl - 3) * 16384 + (n & 1) * 4096
    r = []
    r.append("ds_read_b64_tr_b16 %s, %s offset:%d" % (vr(F + 8, 2), vr(wa), wo))
    r.append("ds_read_b64_tr_b16 %s, %s offset:%d" % (vr(F + 10, 2), vr(wa), wo + 1024))
    r.append("ds_read_b128 %s, %s offset:%d" % (vr(F, 4), vr(vXA + ks), xs))
    r.append("ds_read_b128 %s, %s offset:%d" % (vr(F + 4, 4), vr(vXB + ks), xs))
    r.append("ds_read_b64_tr_b16 %s, %s offset:%d" % (vr(F + 12, 2), vr(wa), wo + 8192))
    r.append("ds_read_b64_tr_b16 %s, %s offset:%d" % (vr(F + 14, 2), vr(wa), wo + 8192 + 1024))
    if ssm:
        r.append("ds_read_b128 %s, %s offset:%d" % (vr(F + 16, 4), vr(vBA + ks), xs))
        r.append("ds_read_b128 %s, %s offset:%d" % (vr(F + 20, 4), vr(vBA + ks), xs + 4096))
    return r
def mfmas(n, ssm):
    F = FR[n & 1]
    def m(d, a, b): return "v_mfma_f32_32x32x16_bf16 %s, %s, %s, %s" % (vr(d, 16), vr(a, 4), vr(b, 4), vr(d, 16) if n else "0")
    r = [m(AG[0], F + 8, F), m(AG[1], F + 8, F + 4), m(AU[0], F + 12, F), m(AU[1], F + 12, F + 4)]
    if ssm: r += [m(ASR, F, F + 16), m(ASI, F, F + 20)]
    return r
def w4_check(cmp_, tag, post=None):
    E("s_cmp_lg_u32 s%d, 4" % sW); E("s_cbranch_scc1 CKR" + tag)
    E(cmp_); E("s_nop 4"); E("s_cmp_eq_u32 vcc_lo, -1"); E("s_cbranch_scc0 CKS" + tag); L("CKD" + tag)
    if post: post()
    L("CKR" + tag)
def nonce_post():
    E("v_readfirstlane_b32 s38, v42"); E("v_mov_b32 v43, %d" % NLO); E("ds_write_b32 v43, v42")
LD_N = "buffer_load_dwordx2 v[42:43], v44, %s, 0 offen sc1" % sr(S_DBG, 4)
LD_W = "buffer_load_dword v47, v45, %s, 0 offen sc1" % sr(S_WS, 4)
LD_G = "buffer_load_dword v47, v45, %s, 0 offen offset:1024 sc1" % sr(S_WS, 4)
def main_loop(ssm):
    q = []
    for j in range(4): q.extend([j] * gsize(j))
    def cnt(g): return len(q) - 1 - max(k for k, t in enumerate(q) if t == g)
    NS = OPT["NS"]; NC = NS + 6
    wl = [(i, j) for i in range(8 if ssm else 12) for j in range(2)]
    per = -(-len(wl) // (28 - NC))
    E("s_waitcnt vmcnt(%d)" % cnt(0)); E("s_barrier")
    for s in frag_reads(0, ssm): E(s)
    for n in range(28):
        if n % 2 == 0 and n < 26:
            E("s_waitcnt vmcnt(%d) lgkmcnt(0)" % cnt(n // 2 + 1))
            if n == NC and not ssm: w4_check("v_cmp_eq_u32 vcc, s38, v47", "W")
            E("s_barrier")
            if n == 8 and not ssm: w4_check("v_cmp_eq_u32 vcc, 1, v43", "N", nonce_post)
        else:
            E("s_waitcnt lgkmcnt(0)")
        ms = mfmas(n, ssm); rs = frag_reads(n + 1, ssm) if n < 27 else []
        for k, mm in enumerate(ms):
            E(mm)
            for s in rs[2 * k:2 * k + 2]: E(s)
            if k == 3 and not ssm and n in (2, NS, 22): E({2: LD_N, NS: LD_W, 22: LD_G}[n]); q.append('p')
            if k == 3 and n % 2 == 0: dma_group(n // 2 + 4); q.extend([n // 2 + 4] * gsize(n // 2 + 4))
            if k == 3 and n >= NC:
                for (i, j) in wl[:per]: p2_load('W', i, WSL[i], vP2W, j); q.append('w')
                wl = wl[per:]
    assert not wl
    return cnt('p') if not ssm else 0
def spins():
    for tag, ld, c in (("N", LD_N, "v_cmp_eq_u32 vcc, 1, v43"), ("W", LD_W, "v_cmp_eq_u32 vcc, s38, v47"), ("G", LD_G, "v_cmp_eq_u32 vcc, s38, v47")):
        L("CKS" + tag); poll(ld, c, "-1"); E("s_branch CKD" + tag)
SC = " sc1"
def gelu_calc(t, extra=None):
    g, u = AG[t], AU[t]
    for r0 in range(0, 16, 4):
        T = vT
        if extra:
            for _ in range(3): lds_w(*extra.pop(0))
        for i in range(4): E("v_mul_f32 %s, %s, %s" % (vr(T + i), vr(g + r0 + i), vr(g + r0 + i)))
        for i in range(4): E("v_fma_f32 %s, %s, s72, %s" % (vr(T + i), vr(T + i), vr(T + 8)))
        for i in range(4): E("v_mul_f32 %s, %s, %s" % (vr(T + i), vr(T + i), vr(g + r0 + i)))
        for i in range(4): E("v_exp_f32 %s, %s" % (vr(T + i), vr(T + i)))
        for i in range(4): E("v_mul_f32 %s, %s, %s" % (vr(T + 4 + i), vr(g + r0 + i), vr(u + r0 + i)))
        for i in range(4): E("v_add_f32 %s, 1.0, %s" % (vr(T + i), vr(T + i)))
        for i in range(4): E("v_rcp_f32 %s, %s" % (vr(T + i), vr(T + i)))
        E("s_nop 0")
        for i in range(4): E("v_mul_f32 %s, %s, %s" % (vr(T + i), vr(T + i), vr(T + 4 + i)))
        for i in range(2): E("v_cvt_pk_bf16_f32 %s, %s, %s" % (vr(g + r0 // 2 + i), vr(T + 2 * i), vr(T + 2 * i + 1)))
def gelu_st(t):
    g = AG[t]
    E("buffer_store_dwordx4 %s, %s, %s, s%d offen%s" % (vr(g, 4), vr(vT + 9), sr(S_WS, 4), 73 + t, SC))
    E("buffer_store_dwordx4 %s, %s, %s, s%d offen offset:1024%s" % (vr(g + 4, 4), vr(vT + 9), sr(S_WS, 4), 73 + t, SC))
WSL = [192, 200, 208, 216, 224, 232, 240, 248, 160, 168, 176, 184, 72, 80, 88]
HSL = [16, 24, 32, 40, 48, 56, 64]
ACC2 = 96
vP2W = 46
def p2_ks(i): return i if i < 14 else i - 14
def p2_load(kind, i, R, va, only=None):
    base = (82 if kind == 'W' else 86) + (0 if i < 14 else 2)
    for j in range(2):
        if only is not None and j != only: continue
        E("s_add_u32 s93, s%d, s%d" % (base + j, ROTS[i]))
        E("buffer_load_dwordx4 %s, v%d, %s, s93 offen" % (vr(R + 4 * j, 4), va, sr(S_WS, 4)))
ROTS = list(range(4, 20)) + list(range(22, 27))
def lds_w(i, j, va, other):
    E("s_add_u32 m0, s%d, %d" % (27 + other, (i - 15) * 2048 + j * 1024)); E("s_add_u32 s93, s%d, s%d" % (84 + j, ROTS[i]))
    if other: E("s_sub_u32 s93, s93, %d" % (4 * 7 * 1024))
    E("buffer_load_dwordx4 v%d, %s, s93 offen lds" % (va, sr(S_WS, 4)))
def p2_setup():
    if OPT["MAP1"] == "4x7":
        E("s_cmp_ge_u32 s%d, 7" % sCG); E("s_cselect_b32 s94, 1, 0"); E("s_mul_i32 s95, s94, 7"); E("s_sub_u32 s95, s%d, s95" % sCG)
    else:
        E("s_and_b32 s94, s%d, 1" % sCG); E("s_lshr_b32 s95, s%d, 1" % sCG)
    E("s_lshl_b32 s71, s%d, 1" % sRT); E("s_add_u32 s94, s94, s71")
    E("s_mul_i32 s71, s%d, %d" % (sW, 14 * 1024)); E("s_mul_i32 s75, s%d, %d" % (sW, 7 * 1024)); E("s_add_u32 s75, s75, %d" % (112 * 1024))
    E("s_mul_i32 s77, s95, %d" % (2 * NKS * 1024)); E("s_add_u32 s77, s77, %d" % WB0)
    E("s_add_u32 s82, s77, s71"); E("s_add_u32 s83, s82, %d" % (NKS * 1024)); E("s_add_u32 s84, s77, s75"); E("s_add_u32 s85, s84, %d" % (NKS * 1024))
    E("s_mul_i32 s77, s94, %d" % (2 * NKS * 1024))
    E("s_add_u32 s86, s77, s71"); E("s_add_u32 s87, s86, %d" % (NKS * 1024)); E("s_add_u32 s88, s77, s75"); E("s_add_u32 s89, s88, %d" % (NKS * 1024))
    r = OPT["ROT"]
    E("s_mul_i32 s4, s95, %d" % (2048 * r)); E("s_mul_i32 s18, s95, %d" % (1024 * r))
    for i in range(1, 21):
        if i == 14: continue
        E("s_add_u32 s%d, s%d, 1024" % (ROTS[i], ROTS[i - 1])); E("s_cmp_eq_u32 s%d, %d" % (ROTS[i], 14336 if i < 14 else 7168))
        E("s_cselect_b32 s%d, 0, s%d" % (ROTS[i], ROTS[i]))
    E("s_lshl_b32 s27, s%d, 14" % sW); E("s_sub_u32 s28, s27, 65536")
npoll = [0]
def poll(ld, cmp_, mlo):
    n = npoll[0]; npoll[0] += 1
    E("s_mov_b32 s81, 0")
    L("POLL%d" % n)
    E(ld); E("s_waitcnt vmcnt(0)"); E(cmp_); E("s_nop 4")
    E("s_andn2_b32 s71, %s, vcc_lo" % mlo); E("s_cbranch_scc0 POLLD%d" % n)
    E("s_add_u32 s81, s81, 1"); E("s_cmp_gt_u32 s81, 0x40000"); E("s_cbranch_scc1 POLLD%d" % n)
    E("s_sleep 1"); E("s_branch POLL%d" % n)
    L("POLLD%d" % n)
def gelu_setup():
    c0 = -2.0 * math.log2(math.e) * math.sqrt(2.0 / math.pi)
    E("s_mov_b32 s72, %s" % f2u(c0 * 0.044715)); E("v_mov_b32 %s, %s" % (vr(vT + 8), f2u(c0)))
    E("v_lshlrev_b32 %s, 4, %s" % (vr(vT + 9), vr(vL)))
    E("s_lshl_b32 s75, s%d, 2" % sRT); E("s_add_u32 s73, s75, s%d" % sTA); E("s_xor_b32 s74, s73, 1")
    E("s_mul_i32 s73, s73, %d" % (NKS * 1024)); E("s_mul_i32 s74, s74, %d" % (NKS * 1024))
    E("s_lshl_b32 s75, s%d, 13" % sCG); E("s_lshr_b32 s76, s%d, 1" % sW); E("s_lshl_b32 s76, s76, 11")
    E("s_add_u32 s75, s75, s76"); E("s_add_u32 s76, s73, %d" % (112 * 1024))
    E("s_add_u32 s73, s73, s75"); E("s_add_u32 s74, s74, s75")
    E("s_lshl_b32 s75, s%d, 12" % sCG); E("s_add_u32 s76, s76, s75")
def dump_stamps(base):
    if OPT["STAMP"]:
        E("s_lshl_b32 s92, s2, 3"); E("s_add_u32 s92, s92, s%d" % sW); E("s_lshl_b32 s92, s92, 8"); E("s_add_u32 s92, s92, %d" % base)
        E("s_mov_b32 s%d, %d" % (S_WS + 2, 1 << 26)); E("v_lshlrev_b32 v1, 2, v%d" % vL)
        E("buffer_store_dword v0, v1, %s, s92 offen" % sr(S_WS, 4))

def k1():
    L(NAME + "_kernel")
    E("s_cmp_ge_u32 s2, 256"); E("s_cbranch_scc1 K1_END")
    E("s_add_u32 s2, s2, 224"); E("s_and_b32 s2, s2, 255")
    load_args()
    E("v_lshrrev_b32 v2, 6, v0"); E("v_and_b32 v%d, 63, v0" % vL); E("v_readfirstlane_b32 s%d, v2" % sW)
    if OPT["STAMP"]: E("s_nop 1"); E("v_mov_b32 v0, 0")
    E("s_waitcnt lgkmcnt(0)")
    stamp(0)
    srd(S_X, P_X, XN); srd(S_WS, P_WS, WS_SZ)
    E("s_cmp_ge_u32 s2, 224"); E("s_cbranch_scc1 K1_PREP")
    E("s_and_b32 s71, s2, 7"); E("s_lshr_b32 s72, s2, 3")
    if OPT["MAP1"] == "4x7":
        E("s_lshr_b32 s73, s71, 1"); E("s_lshl_b32 s73, s73, 2"); E("s_and_b32 s74, s72, 3"); E("s_add_u32 s%d, s73, s74" % sRT)
        E("s_and_b32 s73, s71, 1"); E("s_mul_i32 s73, s73, 7"); E("s_lshr_b32 s74, s72, 2"); E("s_add_u32 s%d, s73, s74" % sCG)
    else:
        E("s_lshl_b32 s73, s71, 1"); E("s_and_b32 s74, s72, 1"); E("s_add_u32 s%d, s73, s74" % sRT); E("s_lshr_b32 s%d, s72, 1" % sCG)
    E("s_cmp_lt_u32 s%d, 4" % sW)
    E("s_cselect_b32 s%d, s%d, s%d" % (S_B, P_BRE, P_BIM)); E("s_cselect_b32 s%d, s%d, s%d" % (S_B + 1, P_BRE + 1, P_BIM + 1))
    E("s_cselect_b32 s%d, s%d, s%d" % (S_W, P_WG, P_WU)); E("s_cselect_b32 s%d, s%d, s%d" % (S_W + 1, P_WG + 1, P_WU + 1))
    E("s_and_b32 s%d, s%d, 0xffff" % (S_B + 1, S_B + 1)); E("s_mov_b32 s%d, %d" % (S_B + 2, BN)); E("s_mov_b32 s%d, 0x20000" % (S_B + 3))
    E("s_and_b32 s%d, s%d, 0xffff" % (S_W + 1, S_W + 1)); E("s_mov_b32 s%d, %d" % (S_W + 2, WN)); E("s_mov_b32 s%d, 0x20000" % (S_W + 3))
    E("s_lshl_b32 s%d, s%d, 11" % (sM1, sW)); E("s_lshl_b32 s%d, s%d, 10" % (sM2, sW))
    E("s_and_b32 s71, s%d, 1" % sW); E("s_lshl_b32 s71, s71, 1"); E("s_bfe_u32 s72, s%d, 0x10001" % sW); E("s_add_u32 s%d, s71, s72" % sTA)
    T = vT
    C("DMA source offsets")
    E("s_movk_i32 s77, 896")
    for m, dst in ((0, vXD0), (1, vXD1)):
        E("v_lshrrev_b32 %s, 3, %s" % (vr(T), vr(vL)))
        E("s_lshl_b32 s71, s%d, 4" % sW); E("s_add_u32 s71, s71, %d" % (8 * m)); E("v_add_u32 %s, s71, %s" % (vr(T), vr(T)))
        E("v_and_b32 %s, 31, %s" % (vr(T + 1), vr(T)))
        perm(T + 2, T + 1, T + 3)
        E("v_and_b32 %s, 96, %s" % (vr(T), vr(T))); E("v_add_u32 %s, %s, %s" % (vr(T), vr(T), vr(T + 2)))
        E("s_lshl_b32 s71, s%d, 7" % sRT); E("v_add_u32 %s, s71, %s" % (vr(T), vr(T)))
        E("v_mul_lo_u32 %s, %s, s77" % (vr(T), vr(T)))
        E("v_bfe_u32 %s, %s, 1, 3" % (vr(T + 1), vr(T + 1))); E("v_and_b32 %s, 7, %s" % (vr(T + 2), vr(vL)))
        E("v_xor_b32 %s, %s, %s" % (vr(T + 1), vr(T + 1), vr(T + 2))); E("v_lshl_add_u32 %s, %s, 4, %s" % (vr(dst), vr(T + 1), vr(T)))
    E("v_lshrrev_b32 %s, 3, %s" % (vr(T), vr(vL))); E("s_and_b32 s72, s%d, 3" % sW); E("s_lshl_b32 s71, s72, 3")
    E("v_add_u32 %s, s71, %s" % (vr(T), vr(T))); E("v_bfe_u32 %s, %s, 1, 3" % (vr(T + 1), vr(T)))
    E("s_lshl_b32 s71, s%d, 5" % sCG); E("v_add_u32 %s, s71, %s" % (vr(T), vr(T))); E("v_mul_lo_u32 %s, %s, s77" % (vr(T), vr(T)))
    E("v_xor_b32 %s, %s, %s" % (vr(T + 1), vr(T + 1), vr(T + 2))); E("v_lshl_add_u32 %s, %s, 4, %s" % (vr(vBD), vr(T + 1), vr(T)))
    E("v_lshrrev_b32 %s, 4, %s" % (vr(T), vr(vL))); E("v_and_b32 %s, 15, %s" % (vr(T + 1), vr(vL)))
    E("v_lshlrev_b32 %s, 2, %s" % (vr(T + 2), vr(T))); E("v_xor_b32 %s, %s, %s" % (vr(T + 1), vr(T + 1), vr(T + 2)))
    E("v_mul_u32_u24 %s, 3584, %s" % (vr(T), vr(T))); E("v_lshl_add_u32 %s, %s, 4, %s" % (vr(T), vr(T + 1), vr(T)))
    E("s_mul_i32 s71, s72, %d" % (8 * 3584)); E("s_lshl_b32 s73, s%d, 8" % sCG); E("s_add_u32 s71, s71, s73")
    E("v_add_u32 %s, s71, %s" % (vr(vWD), vr(T)))
    C("SSM parameter loads (p = cg*32 + (l&31))")
    E("v_and_b32 %s, 31, %s" % (vr(T), vr(vL))); E("s_lshl_b32 s71, s%d, 5" % sCG)
    E("v_add_lshl_u32 %s, %s, s71, 1" % (vr(T + 10), vr(T)))
    for p, d in ((P_LRE, T + 11), (P_LIM, T + 12), (P_LDT, T + 13)):
        E("global_load_ushort %s, %s, %s" % (vr(d), vr(T + 10), sr(p, 2)))
    for j in range(4): dma_group(j)
    C("LDS fragment read addresses")
    E("v_lshrrev_b32 %s, 5, %s" % (vr(T + 1), vr(vL))); E("v_bfe_u32 %s, %s, 1, 3" % (vr(T + 2), vr(T)))
    E("s_lshl_b32 s71, s%d, 12" % sTA); E("s_xor_b32 s72, s71, 4096")
    for ks in range(4):
        E("v_add_u32 %s, %d, %s" % (vr(T + 3), 2 * ks, vr(T + 1))); E("v_xor_b32 %s, %s, %s" % (vr(T + 3), vr(T + 3), vr(T + 2)))
        E("v_lshlrev_b32 %s, 4, %s" % (vr(T + 3), vr(T + 3))); E("v_lshl_add_u32 %s, %s, 7, %s" % (vr(T + 3), vr(T), vr(T + 3)))
        E("v_add_u32 %s, s71, %s" % (vr(vXA + ks), vr(T + 3))); E("v_add_u32 %s, s72, %s" % (vr(vXB + ks), vr(T + 3)))
        E("v_add_u32 %s, 16384, %s" % (vr(vBA + ks), vr(T + 3)))
    E("v_bfe_u32 %s, %s, 2, 2" % (vr(T + 2), vr(vL)))
    E("v_lshl_add_u32 %s, %s, 3, %s" % (vr(T + 3), vr(T + 1), vr(T + 2)))
    E("v_lshlrev_b32 %s, 8, %s" % (vr(T + 3), vr(T + 3))); E("s_lshr_b32 s71, s%d, 1" % sW)
    E("v_xor_b32 %s, s71, %s" % (vr(T + 2), vr(T + 2))); E("v_lshl_add_u32 %s, %s, 6, %s" % (vr(T + 3), vr(T + 2), vr(T + 3)))
    E("v_bfe_u32 %s, %s, 4, 1" % (vr(T + 2), vr(vL))); E("v_lshl_add_u32 %s, %s, 5, %s" % (vr(T + 3), vr(T + 2), vr(T + 3)))
    E("v_and_b32 %s, 3, %s" % (vr(T + 2), vr(vL))); E("v_lshl_add_u32 %s, %s, 3, %s" % (vr(T + 3), vr(T + 2), vr(T + 3)))
    E("v_add_u32 %s, %d, %s" % (vr(vWA0), WS0, vr(T + 3))); E("v_add_u32 %s, %d, %s" % (vr(vWA1), WS0 + 49152, vr(T + 3)))
    srd(S_DBG, P_DBG, 256); p2_setup()
    E("s_and_b32 s71, s2, 7"); E("s_lshl_b32 s71, s71, 7"); E("s_add_u32 s71, s71, %d" % FL0); E("s_lshl_b32 s72, s2, 7"); E("s_and_b32 s72, s72, 128")
    E("s_cmp_eq_u32 s%d, 4" % sW); E("s_cselect_b32 s71, s71, 0x7f000000"); E("s_cselect_b32 s72, s72, 0x7f000000")
    E("v_and_b32 v45, 31, v%d" % vL); E("v_lshl_add_u32 v45, v45, 2, s71"); E("v_mov_b32 v44, s72"); E("v_lshlrev_b32 v%d, 4, v%d" % (vP2W, vL))
    E("s_cmp_ge_u32 s%d, 4" % sW); E("s_cbranch_scc1 K1_PLAIN")
    E("s_waitcnt vmcnt(14)")
    a, b, d = T + 11, T + 12, T + 13
    for r in (a, b, d): E("v_lshlrev_b32 %s, 16, %s" % (vr(r), vr(r)))
    E("v_mul_f32 %s, %s, %s" % (vr(d), f2u(math.log2(math.e)), vr(d))); E("v_exp_f32 %s, %s" % (vr(d), vr(d))); E("s_nop 0")
    E("v_cvt_pk_bf16_f32 %s, %s, %s" % (vr(d), vr(d), vr(d))); E("v_lshlrev_b32 %s, 16, %s" % (vr(d), vr(d)))
    E("v_mul_f32 %s, %s, %s" % (vr(T), vr(d), vr(a))); E("v_mul_f32 %s, %s, %s" % (vr(T + 1), vr(d), vr(b)))
    E("v_mul_f32 %s, %s, %s" % (vr(T), f2u(math.log2(math.e)), vr(T))); E("v_mul_f32 %s, %s, %s" % (vr(T + 1), f2u(0.5 / math.pi), vr(T + 1)))
    E("v_rndne_f32 %s, %s" % (vr(T + 2), vr(T + 1))); E("v_sub_f32 %s, %s, %s" % (vr(T + 1), vr(T + 1), vr(T + 2)))
    E("v_exp_f32 %s, %s" % (vr(T), vr(T))); E("v_cos_f32 %s, %s" % (vr(T + 2), vr(T + 1))); E("v_sin_f32 %s, %s" % (vr(T + 3), vr(T + 1))); E("s_nop 0")
    E("v_mul_f32 %s, %s, %s" % (vr(vLR), vr(T), vr(T + 2))); E("v_mul_f32 %s, %s, %s" % (vr(vLI), vr(T), vr(T + 3)))
    C("coef = 2*(lam-1)/Lam")
    E("v_add_f32 %s, -1.0, %s" % (vr(T), vr(vLR))); E("v_mul_f32 %s, %s, %s" % (vr(T + 1), vr(a), vr(a)))
    E("v_fma_f32 %s, %s, %s, %s" % (vr(T + 1), vr(b), vr(b), vr(T + 1))); E("v_rcp_f32 %s, %s" % (vr(T + 1), vr(T + 1)))
    E("v_mul_f32 %s, %s, %s" % (vr(vCR), vr(T), vr(a))); E("v_mul_f32 %s, %s, %s" % (vr(vCI), vr(vLI), vr(a)))
    E("v_fma_f32 %s, %s, %s, %s" % (vr(vCR), vr(vLI), vr(b), vr(vCR))); E("v_fma_f32 %s, -%s, %s, %s" % (vr(vCI), vr(T), vr(b), vr(vCI)))
    E("v_add_f32 %s, %s, %s" % (vr(T + 1), vr(T + 1), vr(T + 1)))
    E("v_mul_f32 %s, %s, %s" % (vr(vCR), vr(vCR), vr(T + 1))); E("v_mul_f32 %s, %s, %s" % (vr(vCI), vr(vCI), vr(T + 1)))
    cmul(T, T + 1, vLR, vLI, vLR, vLI); cmul(T + 2, T + 3, T, T + 1, T, T + 1); cmul(T, T + 1, T + 2, T + 3, T + 2, T + 3)
    cmul(vL16R, vL16I, T, T + 1, T, T + 1)
    cmul(T, T + 1, vL16R, vL16I, vL16R, vL16I); cmul(T + 2, T + 3, T, T + 1, T, T + 1); cmul(vL128R, vL128I, T + 2, T + 3, T + 2, T + 3)
    stamp(1)
    main_loop(True)
    stamp(2)
    gelu_setup()
    E("v_mov_b32 v%d, %d" % (T + 11, NLO)); E("ds_read_b32 v%d, v%d" % (T + 11, T + 11))
    C("pass 1: end state of this lane's 16 steps")
    H = [T, T + 2]
    cfma(H[1], H[1] + 1, vLR, vLI, ASR, ASI, ASR + 1, ASI + 1)
    for j in range(2, 16):
        cfma(H[j & 1], H[j & 1] + 1, vLR, vLI, H[(j - 1) & 1], H[(j - 1) & 1] + 1, ASR + j, ASI + j)
    E("v_and_b32 %s, 31, %s" % (vr(T + 4), vr(vL))); E("v_lshlrev_b32 %s, 3, %s" % (vr(T + 4), vr(T + 4)))
    E("s_lshl_b32 s71, s%d, 9" % sTA); E("s_add_u32 s71, s71, %d" % EXO)
    E("v_lshl_add_u32 %s, %s, 3, s71" % (vr(T + 5), vr(vL)))
    E("ds_write_b64 %s, %s" % (vr(T + 5), vr(H[1], 2)))
    E("v_add_u32 %s, %d, %s" % (vr(T + 5), EXO, vr(T + 4)))
    E("s_waitcnt lgkmcnt(0)"); E("s_barrier")
    for s in range(8): E("ds_read_b64 %s, %s offset:%d" % (vr(vEE + 2 * s, 2), vr(T + 5), s * 256))
    E("s_lshl_b32 s78, s%d, 13" % sCG); E("s_add_u32 s78, s78, %d" % E0); E("s_add_u32 s79, s78, 4096")
    E("v_mov_b32 %s, %s" % (vr(T + 10), vr(T + 4))); E("v_lshlrev_b32 %s, 1, %s" % (vr(T + 12), vr(T + 4)))
    E("v_readfirstlane_b32 s38, v%d" % (T + 11))
    E("s_cmp_lg_u32 s%d, 0" % sW); E("s_cbranch_scc1 K1_NOPUB")
    E("s_waitcnt lgkmcnt(0)")
    cfma(H[1], H[1] + 1, vL16R, vL16I, vEE, vEE + 1, vEE + 2, vEE + 3)
    for s in range(2, 8):
        cfma(H[s & 1], H[s & 1] + 1, vL16R, vL16I, H[(s - 1) & 1], H[(s - 1) & 1] + 1, vEE + 2 * s, vEE + 2 * s + 1)
    E("s_lshl_b32 s71, s%d, 9" % sRT); E("s_add_u32 s71, s71, s78")
    E("v_mov_b32 %s, %s" % (vr(T + 4), vr(H[1]))); E("v_mov_b32 %s, s38" % vr(T + 5)); E("v_mov_b32 %s, %s" % (vr(T + 6), vr(H[1] + 1))); E("v_mov_b32 %s, s38" % vr(T + 7))
    E("buffer_store_dwordx4 %s, %s, %s, s71 offen sc1" % (vr(T + 4, 4), vr(T + 12), sr(S_WS, 4)))
    L("K1_NOPUB")
    C("gate values for this lane's 16 steps -> v2..v17")
    E("v_lshrrev_b32 v18, 5, v%d" % vL); E("v_lshlrev_b32 v18, 6, v18"); E("s_lshl_b32 s71, s%d, 2" % sRT); E("s_add_u32 s71, s71, s%d" % sTA)
    E("s_lshl_b32 s71, s71, 7"); E("s_add_u32 s71, s71, %d" % G0)
    for q in range(4): E("buffer_load_dwordx4 %s, v18, %s, s71 offen offset:%d sc1" % (vr(2 + 4 * q, 4), sr(S_WS, 4), 16 * q))
    stamp(3)
    gelu_calc(0); gelu_calc(1)
    stamp(4)
    C("look-back")
    RC = [64 + 4 * c if c < 8 else 128 + 4 * (c - 8) for c in range(15)]
    E("s_mov_b32 s81, 0")
    L("K1_LBP")
    for c in range(15):
        E("s_cmp_le_u32 s%d, %d" % (sRT, c)); E("s_cbranch_scc1 K1_LBL")
        E("buffer_load_dwordx4 %s, %s, %s, s%d offen offset:%d sc1" % (vr(RC[c], 4), vr(T + 12), sr(S_WS, 4), 78 + c // 8, (c % 8) * 512))
    L("K1_LBL")
    E("v_mov_b32 %s, 0" % vr(T + 6)); E("s_waitcnt vmcnt(0)")
    for c in range(15):
        E("s_cmp_le_u32 s%d, %d" % (sRT, c)); E("s_cbranch_scc1 K1_LBC")
        E("v_xor_b32 %s, s38, %s" % (vr(T + 7), vr(RC[c] + 1))); E("v_xor_b32 %s, s38, %s" % (vr(T), vr(RC[c] + 3)))
        E("v_or3_b32 %s, %s, %s, %s" % (vr(T + 6), vr(T + 6), vr(T + 7), vr(T)))
    L("K1_LBC")
    E("v_cmp_ne_u32 vcc, 0, %s" % vr(T + 6)); E("s_nop 4"); E("s_or_b32 s71, vcc_lo, vcc_hi"); E("s_cbranch_scc0 K1_LBK")
    E("s_add_u32 s81, s81, 1"); E("s_cmp_gt_u32 s81, 0x40000"); E("s_cbranch_scc1 K1_LBK")
    E("s_sleep 1"); E("s_branch K1_LBP")
    L("K1_LBK")
    stamp(9)
    gelu_st(0); gelu_st(1)
    E("v_mov_b32 %s, 0" % vr(T)); E("v_mov_b32 %s, 0" % vr(T + 1))
    E("v_lshrrev_b32 %s, 5, %s" % (vr(T + 6), vr(vL))); E("s_lshl_b32 s71, s%d, 1" % sTA); E("v_add_u32 %s, s71, %s" % (vr(T + 6), vr(T + 6)))
    E("s_waitcnt lgkmcnt(0)")
    for c in range(15):
        E("s_cmp_le_u32 s%d, %d" % (sRT, c)); E("s_cbranch_scc1 K1_LBD")
        cfma(RC[c], RC[c] + 2, vL128R, vL128I, T, T + 1, RC[c], RC[c] + 2)
        E("v_mov_b32 %s, %s" % (vr(T), vr(RC[c]))); E("v_mov_b32 %s, %s" % (vr(T + 1), vr(RC[c] + 2)))
    L("K1_LBD")
    for s in range(7):
        E("v_cmp_lt_u32 vcc, %d, %s" % (s, vr(T + 6)))
        cfma(T + 2, T + 3, vL16R, vL16I, T, T + 1, vEE + 2 * s, vEE + 2 * s + 1)
        E("v_cndmask_b32 %s, %s, %s, vcc" % (vr(T), vr(T), vr(T + 2))); E("v_cndmask_b32 %s, %s, %s, vcc" % (vr(T + 1), vr(T + 1), vr(T + 3)))
    C("pass 2")
    if OPT["EARLY"]:
        for i in (13, 14): p2_load('W', i, WSL[i], vP2W)
    for j in range(16):
        hr, hi = (T, T + 1) if j == 0 else (ASR + j - 1, ASI + j - 1)
        cfma(ASR + j, ASI + j, vLR, vLI, hr, hi, ASR + j, ASI + j)
    OR_, OI = vEC, vEC + 8
    for j in range(0, 16, 2):
        for k in range(2):
            hr, hi = ASR + j + k, ASI + j + k
            E("v_mul_f32 %s, %s, %s" % (vr(T + 4), vr(vCR), vr(2 + j + k))); E("v_mul_f32 %s, %s, %s" % (vr(T + 5), vr(vCI), vr(2 + j + k)))
            E("v_mul_f32 %s, %s, %s" % (vr(T + k), vr(T + 4), vr(hr))); E("v_mul_f32 %s, %s, %s" % (vr(T + 2 + k), vr(T + 4), vr(hi)))
            E("v_fma_f32 %s, -%s, %s, %s" % (vr(T + k), vr(T + 5), vr(hi), vr(T + k)))
            E("v_fma_f32 %s, -%s, %s, -%s" % (vr(T + 2 + k), vr(T + 5), vr(hr), vr(T + 2 + k)))
        E("v_cvt_pk_bf16_f32 %s, %s, %s" % (vr(OR_ + j // 2), vr(T), vr(T + 1)))
        E("v_cvt_pk_bf16_f32 %s, %s, %s" % (vr(OI + j // 2), vr(T + 2), vr(T + 3)))
    C("transpose through LDS: rows k (re p, im p) of 64 B (32 t)")
    E("s_lshl_b32 s71, s%d, 12" % sW); E("s_add_u32 s71, s71, %d" % TRO)
    E("v_lshrrev_b32 %s, 5, %s" % (vr(T), vr(vL))); E("v_lshlrev_b32 %s, 5, %s" % (vr(T + 1), vr(T)))
    E("v_lshl_add_u32 %s, %s, 3, %s" % (vr(T + 1), vr(T + 10), vr(T + 1))); E("v_add_u32 %s, s71, %s" % (vr(T + 1), vr(T + 1)))
    E("ds_write_b128 %s, %s" % (vr(T + 1), vr(OR_, 4))); E("ds_write_b128 %s, %s offset:16" % (vr(T + 1), vr(OR_ + 4, 4)))
    E("ds_write_b128 %s, %s offset:2048" % (vr(T + 1), vr(OI, 4))); E("ds_write_b128 %s, %s offset:2064" % (vr(T + 1), vr(OI + 4, 4)))
    E("v_bfe_u32 %s, %s, 2, 2" % (vr(T + 2), vr(vL))); E("v_lshl_add_u32 %s, %s, 3, %s" % (vr(T + 2), vr(T), vr(T + 2)))
    E("v_lshlrev_b32 %s, 6, %s" % (vr(T + 2), vr(T + 2)))
    E("v_and_b32 %s, 1, %s" % (vr(T + 3), vr(vL))); E("v_lshl_add_u32 %s, %s, 5, %s" % (vr(T + 2), vr(T + 3), vr(T + 2)))
    E("v_bfe_u32 %s, %s, 4, 1" % (vr(T + 3), vr(vL))); E("v_lshl_add_u32 %s, %s, 4, %s" % (vr(T + 2), vr(T + 3), vr(T + 2)))
    E("v_bfe_u32 %s, %s, 1, 1" % (vr(T + 3), vr(vL))); E("v_lshl_add_u32 %s, %s, 3, %s" % (vr(T + 2), vr(T + 3), vr(T + 2)))
    E("v_add_u32 %s, s71, %s" % (vr(T + 2), vr(T + 2)))
    E("s_waitcnt lgkmcnt(0)")
    if OPT["EARLY"]: p2_load('W', 12, WSL[12], vP2W)
    for q in range(4):
        E("ds_read_b64_tr_b16 %s, %s offset:%d" % (vr(ASR + 4 * q, 2), vr(T + 2), q * 1024))
        E("ds_read_b64_tr_b16 %s, %s offset:%d" % (vr(ASR + 4 * q + 2, 2), vr(T + 2), q * 1024 + 256))
    for q in range(4):
        E("s_waitcnt lgkmcnt(%d)" % (6 - 2 * q))
        E("buffer_store_dwordx4 %s, %s, %s, s76 offen offset:%d%s" % (vr(ASR + 4 * q, 4), vr(vT + 9), sr(S_WS, 4), q * 1024, SC))
    stamp(13)
    E("s_branch K1_JOIN")
    spins()
    L("K1_PLAIN")
    stamp(1)
    pc = main_loop(False)
    stamp(2)
    gelu_setup()
    for i in range(12, 15): p2_load('W', i, WSL[i], vP2W)
    E("s_waitcnt vmcnt(%d)" % (pc + 6)); w4_check("v_cmp_eq_u32 vcc, s38, v47", "G")
    E("s_barrier")
    stamp(3)
    ex = [(i, j, vP2W, o) for i in range(15, 21) for j in range(2) for o in range(2)] if OPT["PACE"] else None
    gelu_calc(0, ex); gelu_st(0); gelu_calc(1, ex); gelu_st(1)
    stamp(4)
    L("K1_JOIN")
    E("s_waitcnt vmcnt(0)"); stamp(14); E("s_barrier")
    stamp(5)
    E("v_mov_b32 v2, v%d" % vP2W)
    E("s_cmp_lg_u32 s%d, 4" % sW); E("s_cbranch_scc1 K1_NOPOLL")
    E("s_lshl_b32 s80, s%d, 7" % sRT); E("s_add_u32 s80, s80, %d" % (FL0 + 2048)); E("s_lshl_b32 s71, s%d, 2" % sCG)
    E("v_mov_b32 v3, s71"); E("v_mov_b32 v4, s38")
    E("buffer_store_dword v4, v3, %s, s80 offen sc1" % sr(S_WS, 4))
    E("v_and_b32 v5, 15, v%d" % vL); E("v_lshlrev_b32 v5, 2, v5")
    poll("buffer_load_dword v6, v5, %s, s80 offen sc1" % sr(S_WS, 4), "v_cmp_eq_u32 vcc, s38, v6", "0x3fff")
    stamp(15)
    L("K1_NOPOLL")
    E("s_cmp_ge_u32 s%d, 4" % sW); E("s_cbranch_scc1 K1_NOW")
    for i in range(8, 12 if OPT["EARLY"] else 15): p2_load('W', i, WSL[i], 2)
    L("K1_NOW")
    if not OPT["PACE"]:
        for i in range(15, 21):
            for j in range(2): lds_w(i, j, 2, 0)
    p2_main()
    L("K1_PREP")
    E("s_sub_u32 s70, s2, 224"); E("s_lshl_b32 s65, s%d, 5" % sW); E("s_add_u32 s65, s65, s70")
    E("s_lshl_b32 s70, s70, 3"); E("s_add_u32 s70, s70, s%d" % sW)
    srd(S_T, P_GW, 896)
    E("v_lshrrev_b32 v2, 3, v1"); E("s_lshl_b32 s71, s70, 3"); E("v_add_u32 v2, s71, v2")
    E("v_and_b32 v3, 7, v1"); E("v_lshlrev_b32 v3, 4, v3"); E("v_mul_u32_u24 v4, 896, v2"); E("v_add_u32 v4, v4, v3")
    E("v_lshlrev_b32 v5, 4, v1"); E("v_and_b32 v122, 7, v1"); E("v_lshlrev_b32 v122, 7, v122"); E("s_mov_b32 s38, %d" % FL0)
    E("s_cmp_ge_u32 s65, 224"); E("s_cbranch_scc1 K1_PN")
    E("s_cmp_ge_u32 s65, 112"); E("s_cbranch_scc1 K1_PC")
    C("W_down k-step s65 -> fragments")
    srd(S_W, P_WD, WN)
    E("s_mul_i32 s71, s65, 14336"); E("s_mul_i32 s72, s%d, 14336" % sW)
    for i in range(14):
        E("s_add_u32 m0, s72, %d" % (i * 1024)); E("s_add_u32 s73, s71, %d" % (i * 1024))
        E("buffer_load_dwordx4 v5, %s, s73 offen lds" % sr(S_W, 4))
    E("v_lshrrev_b32 v6, 5, v1"); E("v_bfe_u32 v7, v1, 2, 2"); E("v_lshl_add_u32 v6, v6, 2, v7"); E("v_mul_u32_u24 v6, 896, v6")
    E("v_bfe_u32 v7, v1, 4, 1"); E("v_lshl_add_u32 v6, v7, 5, v6"); E("v_and_b32 v7, 3, v1"); E("v_lshl_add_u32 v6, v7, 3, v6")
    E("v_add_u32 v6, s72, v6"); E("s_lshl_b32 s71, s65, 10"); E("s_add_u32 s71, s71, %d" % WB0)
    E("s_waitcnt vmcnt(0)")
    for nb in range(14):
        E("ds_read_b64_tr_b16 %s, v6 offset:%d" % (vr(64 + 4 * nb, 2), nb * 64))
        E("ds_read_b64_tr_b16 %s, v6 offset:%d" % (vr(66 + 4 * nb, 2), nb * 64 + 8 * 896))
    E("s_waitcnt lgkmcnt(0)")
    for nb in range(14):
        E("buffer_store_dwordx4 %s, v5, %s, s71 offen sc1" % (vr(64 + 4 * nb, 4), sr(S_WS, 4))); E("s_add_u32 s71, s71, %d" % (NKS * 1024))
    E("s_branch K1_PG")
    L("K1_PC")
    E("s_sub_u32 s66, s65, 112"); E("s_lshr_b32 s67, s66, 3"); E("s_bfe_u32 s68, s66, 0x10002"); E("s_and_b32 s69, s66, 3")
    E("s_cmp_eq_u32 s68, 0")
    E("s_cselect_b32 s%d, s%d, s%d" % (S_B, P_CRE, P_CIM)); E("s_cselect_b32 s%d, s%d, s%d" % (S_B + 1, P_CRE + 1, P_CIM + 1))
    E("s_and_b32 s%d, s%d, 0xffff" % (S_B + 1, S_B + 1)); E("s_mov_b32 s%d, %d" % (S_B + 2, BN)); E("s_mov_b32 s%d, 0x20000" % (S_B + 3))
    E("v_and_b32 v6, 31, v1"); E("s_lshl_b32 s71, s67, 5"); E("v_add_u32 v6, s71, v6"); E("v_mul_u32_u24 v6, 896, v6")
    E("v_lshrrev_b32 v7, 5, v1"); E("v_lshl_add_u32 v6, v7, 4, v6")
    E("s_mul_i32 s69, s69, 7"); E("s_lshl_b32 s71, s69, 5")
    for i in range(7): E("buffer_load_dwordx4 %s, v6, %s, s71 offen offset:%d" % (vr(64 + 4 * i, 4), sr(S_B, 4), i * 32))
    E("s_mul_i32 s72, s67, %d" % NKS); E("s_lshl_b32 s68, s68, 1"); E("s_add_u32 s72, s72, s68"); E("s_add_u32 s72, s72, %d" % (112 + WB0 // 1024))
    E("s_waitcnt vmcnt(0)")
    for i in range(7):
        E("s_add_u32 s73, s69, %d" % i); E("s_lshr_b32 s74, s73, 1"); E("s_lshl_b32 s74, s74, 2"); E("s_and_b32 s73, s73, 1")
        E("s_add_u32 s73, s73, s74"); E("s_add_u32 s73, s73, s72"); E("s_lshl_b32 s73, s73, 10")
        E("buffer_store_dwordx4 %s, v5, %s, s73 offen sc1" % (vr(64 + 4 * i, 4), sr(S_WS, 4)))
    E("s_branch K1_PG")
    L("K1_PN")
    srd(S_DBG, P_DBG, 256); E("v_mov_b32 v44, 0"); E("s_mov_b32 s71, %d" % FL0)
    E("s_cmp_lg_u32 s2, 224"); E("s_cbranch_scc1 K1_PN1")
    E("buffer_load_dword v42, v44, %s, s71 offen sc1" % sr(S_WS, 4)); E("v_and_b32 v44, 1, v1"); E("v_lshlrev_b32 v44, 7, v44"); E("v_mov_b32 v43, 1")
    E("s_waitcnt vmcnt(0)"); E("v_add_u32 v42, 0x9e3779b9, v42"); E("buffer_store_dwordx2 v[42:43], v44, %s, 0 offen sc1" % sr(S_DBG, 4))
    E("s_branch K1_PN2")
    L("K1_PN1")
    poll(LD_N, "v_cmp_eq_u32 vcc, 1, v43", "-1")
    L("K1_PN2")
    E("v_mov_b32 v123, v42")
    E("s_sub_u32 s38, s2, 224"); E("s_lshl_b32 s38, s38, 2"); E("s_add_u32 s38, s38, %d" % FL0)
    L("K1_PG")
    for i in range(7):
        E("buffer_load_dwordx4 %s, v4, %s, 0 offen offset:%d" % (vr(8 + 4 * i, 4), sr(S_X, 4), i * 128))
        E("buffer_load_dwordx4 %s, v3, %s, 0 offen offset:%d" % (vr(36 + 4 * i, 4), sr(S_T, 4), i * 128))
    E("s_waitcnt vmcnt(14)"); E("s_barrier")
    stamp(4)
    E("s_cmp_lg_u32 s%d, 7" % sW); E("s_cbranch_scc1 K1_PF")
    E("buffer_store_dword v123, v122, %s, s38 offen sc1" % sr(S_WS, 4))
    L("K1_PF")
    E("s_waitcnt vmcnt(0)")
    E("v_mov_b32 v6, 0"); E("v_mov_b32 v7, 0"); E("s_mov_b32 s71, 0xffff0000")
    for i in range(28):
        x, w = 8 + i, 36 + i
        E("v_lshlrev_b32 v124, 16, v%d" % x); E("v_and_b32 v125, s71, v%d" % x); E("v_lshlrev_b32 v126, 16, v%d" % w); E("v_and_b32 v127, s71, v%d" % w)
        E("v_mul_f32 v124, v124, v126"); E("v_mul_f32 v125, v125, v127"); E("v_cvt_pk_bf16_f32 v124, v124, v125")
        E("v_lshlrev_b32 v125, 16, v124"); E("v_and_b32 v124, s71, v124"); E("v_add_f32 v6, v6, v125"); E("v_add_f32 v7, v7, v124")
    E("v_add_f32 v6, v6, v7")
    for o in ("0x041F", "0x081F", "0x101F"):
        E("ds_swizzle_b32 v7, v6 offset:%s" % o); E("s_waitcnt lgkmcnt(0)"); E("v_add_f32 v6, v6, v7")
    E("v_cvt_pk_bf16_f32 v6, v6, v6"); E("v_lshlrev_b32 v6, 16, v6"); E("v_mul_f32 v6, %s, v6" % f2u(-math.log2(math.e)))
    E("v_exp_f32 v6, v6"); E("s_nop 0"); E("v_add_f32 v6, 1.0, v6"); E("v_rcp_f32 v6, v6"); E("s_nop 0")
    E("v_cvt_pk_bf16_f32 v6, v6, v6"); E("v_lshlrev_b32 v6, 16, v6"); E("v_lshlrev_b32 v2, 2, v2"); E("s_mov_b32 s71, %d" % G0)
    E("buffer_store_dword v6, v2, %s, s71 offen sc1" % sr(S_WS, 4))
    E("s_waitcnt vmcnt(0)"); E("s_barrier")
    E("s_cmp_lg_u32 s%d, 7" % sW); E("s_cbranch_scc1 K1_PE")
    E("buffer_store_dword v123, v122, %s, s38 offen offset:1024 sc1" % sr(S_WS, 4))
    L("K1_PE")
    stamp(5); dump_stamps(1 << 25)
    L("K1_END")
    E("s_endpgm")

def p2_main():
    C("phase 2")
    srd(S_T, P_D, 896); srd(S_B, P_OUT, 2048 * 448 * 4)
    E("v_and_b32 v4, 31, v1"); perm(5, 4, 6); E("s_lshl_b32 s73, s94, 6"); E("v_add_lshl_u32 v5, v5, s73, 2"); E("s_mov_b32 s74, %d" % G0)
    E("buffer_load_dword v8, v5, %s, s74 offen sc1" % sr(S_WS, 4)); E("buffer_load_dword v9, v5, %s, s74 offen offset:128 sc1" % sr(S_WS, 4))
    E("v_lshrrev_b32 v4, 4, v1"); E("v_and_b32 v6, 15, v1"); E("s_lshl_b32 s75, s95, 7"); E("v_lshl_add_u32 v7, v6, 3, s75")
    E("buffer_load_dwordx2 v[10:11], v7, %s, 0 offen" % sr(S_T, 4))
    E("s_and_b32 s75, s%d, 3" % sW); E("s_lshl_b32 s75, s75, 2"); E("s_lshr_b32 s76, s%d, 2" % sW); E("s_lshl_b32 s76, s76, 5")
    E("s_add_u32 s75, s75, s76"); E("s_add_u32 s75, s75, s73"); E("v_add_u32 v3, s75, v4")
    E("v_lshlrev_b32 v4, 2, v3"); E("v_mul_u32_u24 v3, 896, v3"); E("v_add_u32 v3, v3, v7"); E("s_movk_i32 s77, %d" % (16 * 896))
    E("buffer_load_dwordx2 v[12:13], v3, %s, 0 offen" % sr(S_X, 4)); E("buffer_load_dwordx2 v[14:15], v3, %s, s77 offen" % sr(S_X, 4))
    E("buffer_load_dword v6, v4, %s, s74 offen sc1" % sr(S_WS, 4)); E("buffer_load_dword v7, v4, %s, s74 offen offset:64 sc1" % sr(S_WS, 4))
    E("s_barrier")
    stamp(6)
    wreg = {i: WSL[i] for i in range(15)}; hreg = {}; order = []
    for i, R in enumerate(HSL): p2_load('H', i, R, 2); hreg[i] = R; order.append(i)
    nh = len(HSL)
    E("s_lshl_b32 s75, s%d, 14" % sW); E("v_add_u32 v5, s75, v2")
    for i in range(21):
        E("s_waitcnt vmcnt(%d)" % (2 * (len(order) - 1 - i)))
        if i == 14:
            E("v_sub_f32 v4, 1.0, v8"); E("v_sub_f32 v5, 1.0, v9"); E("v_cvt_pk_bf16_f32 v4, v4, v5")
            E("v_and_b32 v5, 0xffff0000, v4"); E("v_lshlrev_b32 v4, 16, v4"); E("s_nop 7")
            for k in range(4):
                for r in range(16): E("v_mul_f32 v%d, v%d, v%d" % (ACC2 + 16 * k + r, 4 + (k & 1), ACC2 + 16 * k + r))
            E("s_waitcnt lgkmcnt(0)"); E("s_nop 0")
        for k in range(4):
            A = ACC2 + 16 * k
            E("v_mfma_f32_32x32x16_bf16 %s, %s, %s, %s" % (vr(A, 16), vr(wreg[i] + 4 * (k >> 1), 4), vr(hreg[i] + 4 * (k & 1), 4), vr(A, 16) if i else "0"))
        for R in (hreg[i], wreg[i]):
            if nh < 21: p2_load('H', nh, R, 2); hreg[nh] = R; order.append(nh); nh += 1
        if 8 <= i < 14:
            R = wreg[i - 1]; wreg[i + 7] = R
            for j in range(2): E("ds_read_b128 %s, v5 offset:%d" % (vr(R + 4 * j, 4), (i - 8) * 2048 + j * 1024))
    stamp(7)
    C("partials -> LDS [wave][row 64][256B], chunk ^= row&7")
    E("v_and_b32 v16, 31, v1"); E("v_lshrrev_b32 v17, 5, v1"); E("v_and_b32 v18, 7, v1"); E("v_xor_b32 v17, v17, v18")
    E("s_lshl_b32 s75, s%d, 14" % sW); E("v_lshl_add_u32 v16, v16, 8, s75")
    for q in range(4):
        E("v_xor_b32 v18, %d, v17" % (2 * q)); E("v_lshl_add_u32 v%d, v18, 4, v16" % (20 + q))
    for k in range(4):
        for q in range(4): E("ds_write_b128 v%d, %s offset:%d" % (20 + q, vr(ACC2 + 16 * k + 4 * q, 4), (k & 1) * 8192 + (k >> 1) * 128))
    E("v_lshrrev_b32 v16, 4, v1"); E("s_lshl_b32 s75, s%d, 3" % sW); E("v_add_u32 v16, s75, v16"); E("v_and_b32 v18, 15, v1")
    for i in range(2):
        E("v_add_u32 v17, %d, v16" % (4 * i)); E("v_and_b32 v19, 7, v17"); E("v_xor_b32 v19, v19, v18"); E("v_lshlrev_b32 v19, 4, v19")
        E("v_lshl_add_u32 v%d, v17, 8, v19" % (24 + i)); E("v_add_u32 v%d, 65536, v%d" % (26 + i, 24 + i))
    E("v_lshlrev_b32 v3, 1, v3")
    E("v_lshlrev_b32 v16, 16, v10"); E("v_and_b32 v17, 0xffff0000, v10"); E("v_lshlrev_b32 v18, 16, v11"); E("v_and_b32 v19, 0xffff0000, v11")
    for i in range(2):
        x0, x1, S = 12 + 2 * i, 13 + 2 * i, 28 + 4 * i
        E("v_lshlrev_b32 v%d, 16, v%d" % (S, x0)); E("v_and_b32 v%d, 0xffff0000, v%d" % (S + 1, x0))
        E("v_lshlrev_b32 v%d, 16, v%d" % (S + 2, x1)); E("v_and_b32 v%d, 0xffff0000, v%d" % (S + 3, x1))
        for r in range(4): E("v_mul_f32 v%d, v%d, v%d" % (S + r, S + r, 16 + r))
        E("v_cvt_pk_bf16_f32 v%d, v%d, v%d" % (x0, S, S + 1)); E("v_cvt_pk_bf16_f32 v%d, v%d, v%d" % (x1, S + 2, S + 3))
        E("v_lshlrev_b32 v%d, 16, v%d" % (S, x0)); E("v_and_b32 v%d, 0xffff0000, v%d" % (S + 1, x0))
        E("v_lshlrev_b32 v%d, 16, v%d" % (S + 2, x1)); E("v_and_b32 v%d, 0xffff0000, v%d" % (S + 3, x1))
        for r in range(4): E("v_mul_f32 v%d, v%d, v%d" % (S + r, S + r, 6 + i))
    E("s_waitcnt lgkmcnt(0)"); E("s_barrier")
    for i in range(2):
        for sw in range(8): E("ds_read_b128 %s, v%d offset:%d" % (vr(48 + 32 * i + 4 * sw, 4), (24 if sw < 4 else 26) + i, (sw & 3) * 16384))
    for i in range(2):
        B, S = 48 + 32 * i, 28 + 4 * i
        for sw in range(8):
            if sw % 2 == 0: E("s_waitcnt lgkmcnt(%d)" % (14 - 8 * i - sw))
            for r in range(4): E("v_add_f32 v%d, v%d, v%d" % (S + r, S + r, B + 4 * sw + r))
        E("s_mov_b32 s77, %d" % (i * 16 * 1792))
        E("buffer_store_dwordx4 %s, v3, %s, s77 offen" % (vr(S, 4), sr(S_B, 4)))
    stamp(8); dump_stamps(1 << 25)
    E("s_endpgm")

def desc(name, vg, acc):
    return [".p2align 6", ".amdhsa_kernel %s" % name, "  .amdhsa_next_free_vgpr %d" % vg, "  .amdhsa_next_free_sgpr 96",
            "  .amdhsa_accum_offset %d" % acc, "  .amdhsa_group_segment_fixed_size 0", "  .amdhsa_kernarg_size 136",
            "  .amdhsa_user_sgpr_count 2", "  .amdhsa_user_sgpr_kernarg_segment_ptr 1", "  .amdhsa_system_sgpr_workgroup_id_x 1",
            ".end_amdhsa_kernel"]
hdr = [l.rstrip("\n") for l in open("cdna_kernels/%s.s.ref" % NAME) if l.startswith(";   offset") or l.startswith("; Kernarg")]
KN = NAME + "_kernel"
hdr += ["; @launch grid=(256,1,1) block=(512,1,1) lds=163840", '.amdgcn_target "amdgcn-amd-amdhsa--gfx950"', ".text"]
k1()
body = [".globl %s" % KN, ".p2align 8", ".type %s,@function" % KN] + list(out)
tail = ['.section .rodata,"a"'] + desc(KN, 256, 256)
open(sys.argv[1], "w").write("\n".join(hdr + body + tail) + "\n")
```

```python
import sys, struct, math
NAME = "gated_mix__ssm_conv_s5__glu_gated_geglu__prompt"
OPT = dict(ROT=1, PACE=1, EARLY=1, NS=14, M16=0, TWICE=0, NOMMA=0, NODMA=0, NOLDS=0, D2=8, MAP1="4x7", STAMP=0)
for a in sys.argv[2:]:
    k, v = a.split("="); OPT[k] = int(v) if v.lstrip("-").isdigit() else v
out = []
def E(s): out.append("    " + s)
def L(s): out.append(s + ":")
def C(s): out.append("    ; " + s)
def f2u(x): return "0x%08x" % struct.unpack("<I", struct.pack("<f", x))[0]
def vr(b, n=1): return "v%d" % b if n == 1 else "v[%d:%d]" % (b, b + n - 1)
def ar(b, n=1): return "a%d" % b if n == 1 else "a[%d:%d]" % (b, b + n - 1)
def sr(b, n=1): return "s%d" % b if n == 1 else "s[%d:%d]" % (b, b + n - 1)
def srd(d, p, nbytes):
    E("s_mov_b32 s%d, s%d" % (d, p)); E("s_and_b32 s%d, s%d, 0xffff" % (d + 1, p + 1))
    E("s_mov_b32 s%d, %d" % (d + 2, nbytes)); E("s_mov_b32 s%d, 0x20000" % (d + 3))
NKS = 168
HA0 = 0; HA_SZ = 64 * NKS * 1024
WB0 = HA_SZ; WB_SZ = 14 * NKS * 1024
G0 = WB0 + WB_SZ; E0 = G0 + 8192; FL0 = E0 + 14 * 16 * 512; WS_SZ = FL0 + 4096; NLO = 157696
XN = 2048 * 448 * 2; BN = 448 * 448 * 2; WN = 448 * 1792 * 2
P_X, P_LRE, P_LIM, P_BRE, P_BIM, P_CRE, P_CIM, P_LDT = 4, 6, 8, 10, 12, 14, 16, 18
P_D, P_BX, P_WG, P_WU, P_WD, P_GW, P_OUT, P_DBG, P_WS = 20, 22, 24, 26, 28, 30, 32, 34, 36
def load_args():
    E("s_load_dwordx16 s[4:19], s[0:1], 0"); E("s_load_dwordx16 s[20:35], s[0:1], 64")
    E("s_load_dwordx2 s[36:37], s[0:1], 128")
def perm(dst, r, t1):
    E("v_and_b32 %s, 3, %s" % (vr(dst), vr(r)))
    E("v_lshrrev_b32 %s, 3, %s" % (vr(t1), vr(r)))
    E("v_lshl_add_u32 %s, %s, 2, %s" % (vr(dst), vr(t1), vr(dst)))
    E("v_bfe_u32 %s, %s, 2, 1" % (vr(t1), vr(r)))
    E("v_lshl_add_u32 %s, %s, 4, %s" % (vr(dst), vr(t1), vr(dst)))
def cmul(dr, di, ar_, ai, br, bi):
    E("v_mul_f32 %s, %s, %s" % (vr(dr), vr(ar_), vr(br))); E("v_mul_f32 %s, %s, %s" % (vr(di), vr(ar_), vr(bi)))
    E("v_fma_f32 %s, -%s, %s, %s" % (vr(dr), vr(ai), vr(bi), vr(dr))); E("v_fma_f32 %s, %s, %s, %s" % (vr(di), vr(ai), vr(br), vr(di)))
def cfma(dr, di, lr, li, hr, hi, ur, ui):
    E("v_fma_f32 %s, %s, %s, %s" % (vr(dr), vr(lr), vr(hr), vr(ur))); E("v_fma_f32 %s, %s, %s, %s" % (vr(di), vr(lr), vr(hi), vr(ui)))
    E("v_fma_f32 %s, -%s, %s, %s" % (vr(dr), vr(li), vr(hi), vr(dr))); E("v_fma_f32 %s, %s, %s, %s" % (vr(di), vr(li), vr(hr), vr(di)))
def stamp(slot):
    if OPT["STAMP"]:
        E("s_memrealtime s[90:91]"); E("s_waitcnt lgkmcnt(0)"); E("v_writelane_b32 v0, s90, %d" % slot)
        if slot in (1, 2): E("s_memtime s[90:91]"); E("s_waitcnt lgkmcnt(0)"); E("v_writelane_b32 v0, s90, %d" % (slot + 10))

S_X, S_B, S_W, S_WS, S_DBG, S_T = 40, 44, 48, 52, 56, 60
sW, sRT, sCG, sTA, sM1, sM2, sM3 = 64, 65, 66, 67, 68, 69, 70
XBS = [0, 24576, 49152]; WS0 = 73728; EXO = 155648; TRO = 131072
vL, vXD0, vXD1, vBD, vWD = 1, 2, 3, 4, 5
vXA, vXB, vBA, vWA0, vWA1 = 6, 10, 14, 18, 19
vLR, vLI, vCR, vCI, vL16R, vL16I, vL128R, vL128I = 20, 21, 22, 23, 24, 25, 26, 27
vT = 28
FR = [48, 72]
AG = [96, 112]; AU = [128, 144]; ASR, ASI = 160, 176
vEE = 48
vEC = 64
def dma_group(j):
    if j > 13 or (OPT["NODMA"] and j > 3): return
    if j % 2 == 0:
        st = j // 2; slot = XBS[st % 3]
        E("s_mov_b32 s71, %d" % (st * 128))
        E("s_add_u32 m0, s%d, %d" % (sM1, slot)); E("s_nop 0")
        E("buffer_load_dwordx4 %s, %s, s71 offen lds" % (vr(vXD0), sr(S_X, 4)))
        E("s_add_u32 m0, s%d, %d" % (sM1, slot + 1024)); E("s_nop 0")
        E("buffer_load_dwordx4 %s, %s, s71 offen lds" % (vr(vXD1), sr(S_X, 4)))
        E("s_add_u32 m0, s%d, %d" % (sM2, slot + 16384)); E("s_nop 0")
        E("buffer_load_dwordx4 %s, %s, s71 offen lds" % (vr(vBD), sr(S_B, 4)))
    for m in range(2):
        E("s_mov_b32 s71, %d" % ((32 * j + 4 * m) * 3584))
        E("s_add_u32 m0, s%d, %d" % (sM1, WS0 + (j % 5) * 16384 + m * 1024)); E("s_nop 0")
        E("buffer_load_dwordx4 %s, %s, s71 offen lds" % (vr(vWD), sr(S_W, 4)))
def gsize(j): return 0 if j > 13 else (5 if j % 2 == 0 else 2)
def frag_reads(n, ssm):
    F = FR[n & 1]; xs = XBS[(n // 4) % 3]; ks = n % 4; i = n // 2; wsl = i % 5
    wa = vWA0 if wsl < 3 else vWA1; wo = (wsl if wsl < 3 else wsl - 3) * 16384 + (n & 1) * 4096
    r = []
    r.append("ds_read_b64_tr_b16 %s, %s offset:%d" % (vr(F + 8, 2), vr(wa), wo))
    r.append("ds_read_b64_tr_b16 %s, %s offset:%d" % (vr(F + 10, 2), vr(wa), wo + 1024))
    r.append("ds_read_b128 %s, %s offset:%d" % (vr(F, 4), vr(vXA + ks), xs))
    r.append("ds_read_b128 %s, %s offset:%d" % (vr(F + 4, 4), vr(vXB + ks), xs))
    r.append("ds_read_b64_tr_b16 %s, %s offset:%d" % (vr(F + 12, 2), vr(wa), wo + 8192))
    r.append("ds_read_b64_tr_b16 %s, %s offset:%d" % (vr(F + 14, 2), vr(wa), wo + 8192 + 1024))
    if ssm:
        r.append("ds_read_b128 %s, %s offset:%d" % (vr(F + 16, 4), vr(vBA + ks), xs))
        r.append("ds_read_b128 %s, %s offset:%d" % (vr(F + 20, 4), vr(vBA + ks), xs + 4096))
    return r
def mfmas(n, ssm):
    F = FR[n & 1]
    def m(d, a, b): return "v_mfma_f32_32x32x16_bf16 %s, %s, %s, %s" % (vr(d, 16), vr(a, 4), vr(b, 4), vr(d, 16) if n else "0")
    r = [m(AG[0], F + 8, F), m(AG[1], F + 8, F + 4), m(AU[0], F + 12, F), m(AU[1], F + 12, F + 4)]
    if ssm: r += [m(ASR, F, F + 16), m(ASI, F, F + 20)]
    return r
def w4_check(cmp_, tag, post=None):
    E("s_cmp_lg_u32 s%d, 4" % sW); E("s_cbranch_scc1 CKR" + tag)
    E(cmp_); E("s_nop 4"); E("s_cmp_eq_u32 vcc_lo, -1"); E("s_cbranch_scc0 CKS" + tag); L("CKD" + tag)
    if post: post()
    L("CKR" + tag)
def nonce_post():
    E("v_readfirstlane_b32 s38, v42"); E("v_mov_b32 v43, %d" % NLO); E("ds_write_b32 v43, v42")
LD_N = "buffer_load_dwordx2 v[42:43], v44, %s, 0 offen sc1" % sr(S_DBG, 4)
LD_W = "buffer_load_dword v47, v45, %s, 0 offen sc1" % sr(S_WS, 4)
LD_G = "buffer_load_dword v47, v45, %s, 0 offen offset:1024 sc1" % sr(S_WS, 4)
def main_loop(ssm):
    q = []
    for j in range(4): q.extend([j] * gsize(j))
    def cnt(g): return len(q) - 1 - max(k for k, t in enumerate(q) if t == g)
    NS = OPT["NS"]; NC = NS + 6
    wl = [(i, j) for i in range(8 if ssm else 12) for j in range(2)]
    per = -(-len(wl) // (28 - NC))
    E("s_waitcnt vmcnt(%d)" % cnt(0)); E("s_barrier")
    for s in frag_reads(0, ssm): E(s)
    for n in range(28):
        if n % 2 == 0 and n < 26:
            E("s_waitcnt vmcnt(%d) lgkmcnt(0)" % cnt(n // 2 + 1))
            if n == NC and not ssm: w4_check("v_cmp_eq_u32 vcc, s38, v47", "W")
            E("s_barrier")
            if n == 8 and not ssm: w4_check("v_cmp_eq_u32 vcc, 1, v43", "N", nonce_post)
        else:
            E("s_waitcnt lgkmcnt(0)")
        ms = mfmas(n, ssm); rs = frag_reads(n + 1, ssm) if n < 27 else []
        for k, mm in enumerate(ms):
            E(mm)
            for s in rs[2 * k:2 * k + 2]: E(s)
            if k == 3 and not ssm and n in (2, NS, 22): E({2: LD_N, NS: LD_W, 22: LD_G}[n]); q.append('p')
            if k == 3 and n % 2 == 0: dma_group(n // 2 + 4); q.extend([n // 2 + 4] * gsize(n // 2 + 4))
            if k == 3 and n >= NC:
                for (i, j) in wl[:per]: p2_load('W', i, WSL[i], vP2W, j); q.append('w')
                wl = wl[per:]
    assert not wl
    return cnt('p') if not ssm else 0
def spins():
    for tag, ld, c in (("N", LD_N, "v_cmp_eq_u32 vcc, 1, v43"), ("W", LD_W, "v_cmp_eq_u32 vcc, s38, v47"), ("G", LD_G, "v_cmp_eq_u32 vcc, s38, v47")):
        L("CKS" + tag); poll(ld, c, "-1"); E("s_branch CKD" + tag)
SC = " sc1"
def gelu_calc(t, extra=None):
    g, u = AG[t], AU[t]
    for r0 in range(0, 16, 4):
        T = vT
        if extra:
            for _ in range(3): lds_w(*extra.pop(0))
        P = lambda b: vr(b, 2)
        for i in (0, 2): E("v_pk_mul_f32 %s, %s, %s" % (P(T + i), P(g + r0 + i), P(g + r0 + i)))
        for i in (0, 2): E("v_pk_fma_f32 %s, %s, s[72:73], %s op_sel_hi:[1,0,0]" % (P(T + i), P(T + i), P(T + 8)))
        for i in (0, 2): E("v_pk_mul_f32 %s, %s, %s" % (P(T + i), P(T + i), P(g + r0 + i)))
        for i in range(4): E("v_exp_f32 %s, %s" % (vr(T + i), vr(T + i)))
        for i in (0, 2): E("v_pk_mul_f32 %s, %s, %s" % (P(T + 4 + i), P(g + r0 + i), P(u + r0 + i)))
        for i in (0, 2): E("v_pk_add_f32 %s, %s, s[30:31] op_sel_hi:[1,0]" % (P(T + i), P(T + i)))
        for i in range(4): E("v_rcp_f32 %s, %s" % (vr(T + i), vr(T + i)))
        for i in (0, 2): E("v_pk_mul_f32 %s, %s, %s" % (P(T + i), P(T + i), P(T + 4 + i)))
        for i in range(2): E("v_cvt_pk_bf16_f32 %s, %s, %s" % (vr(g + r0 // 2 + i), vr(T + 2 * i), vr(T + 2 * i + 1)))
def gelu_st(t):
    g = AG[t]
    E("buffer_store_dwordx4 %s, %s, %s, s%d offen%s" % (vr(g, 4), vr(vT + 9), sr(S_WS, 4), 73 + t, SC))
    E("buffer_store_dwordx4 %s, %s, %s, s%d offen offset:1024%s" % (vr(g + 4, 4), vr(vT + 9), sr(S_WS, 4), 73 + t, SC))
WSL = [192, 200, 208, 216, 224, 232, 240, 248, 160, 168, 176, 184, 72, 80, 88]
HSL = [16, 24, 32, 40, 48, 56, 64]
ACC2 = 96
vP2W = 46
def p2_ks(i): return i if i < 14 else i - 14
def p2_load(kind, i, R, va, only=None):
    base = (82 if kind == 'W' else 86) + (0 if i < 14 else 2)
    for j in range(2):
        if only is not None and j != only: continue
        E("s_add_u32 s93, s%d, s%d" % (base + j, ROTS[i]))
        E("buffer_load_dwordx4 %s, v%d, %s, s93 offen" % (vr(R + 4 * j, 4), va, sr(S_WS, 4)))
ROTS = list(range(4, 20)) + list(range(22, 27))
def lds_w(i, j, va, other):
    E("s_add_u32 m0, s%d, %d" % (27 + other, (i - 15) * 2048 + j * 1024)); E("s_add_u32 s93, s%d, s%d" % (84 + j, ROTS[i]))
    if other: E("s_sub_u32 s93, s93, %d" % (4 * 7 * 1024))
    E("buffer_load_dwordx4 v%d, %s, s93 offen lds" % (va, sr(S_WS, 4)))
def p2_setup():
    if OPT["MAP1"] == "4x7":
        E("s_cmp_ge_u32 s%d, 7" % sCG); E("s_cselect_b32 s94, 1, 0"); E("s_mul_i32 s95, s94, 7"); E("s_sub_u32 s95, s%d, s95" % sCG)
    else:
        E("s_and_b32 s94, s%d, 1" % sCG); E("s_lshr_b32 s95, s%d, 1" % sCG)
    E("s_lshl_b32 s71, s%d, 1" % sRT); E("s_add_u32 s94, s94, s71")
    E("s_mul_i32 s71, s%d, %d" % (sW, 14 * 1024)); E("s_mul_i32 s75, s%d, %d" % (sW, 7 * 1024)); E("s_add_u32 s75, s75, %d" % (112 * 1024))
    E("s_mul_i32 s77, s95, %d" % (2 * NKS * 1024)); E("s_add_u32 s77, s77, %d" % WB0)
    E("s_add_u32 s82, s77, s71"); E("s_add_u32 s83, s82, %d" % (NKS * 1024)); E("s_add_u32 s84, s77, s75"); E("s_add_u32 s85, s84, %d" % (NKS * 1024))
    E("s_mul_i32 s77, s94, %d" % (2 * NKS * 1024))
    E("s_add_u32 s86, s77, s71"); E("s_add_u32 s87, s86, %d" % (NKS * 1024)); E("s_add_u32 s88, s77, s75"); E("s_add_u32 s89, s88, %d" % (NKS * 1024))
    r = OPT["ROT"]
    E("s_mul_i32 s4, s95, %d" % (2048 * r)); E("s_mul_i32 s18, s95, %d" % (1024 * r))
    for i in range(1, 21):
        if i == 14: continue
        E("s_add_u32 s%d, s%d, 1024" % (ROTS[i], ROTS[i - 1])); E("s_cmp_eq_u32 s%d, %d" % (ROTS[i], 14336 if i < 14 else 7168))
        E("s_cselect_b32 s%d, 0, s%d" % (ROTS[i], ROTS[i]))
    E("s_lshl_b32 s27, s%d, 14" % sW); E("s_sub_u32 s28, s27, 65536")
npoll = [0]
def poll(ld, cmp_, mlo):
    n = npoll[0]; npoll[0] += 1
    E("s_mov_b32 s81, 0")
    L("POLL%d" % n)
    E(ld); E("s_waitcnt vmcnt(0)"); E(cmp_); E("s_nop 4")
    E("s_andn2_b32 s71, %s, vcc_lo" % mlo); E("s_cbranch_scc0 POLLD%d" % n)
    E("s_add_u32 s81, s81, 1"); E("s_cmp_gt_u32 s81, 0x10000"); E("s_cbranch_scc1 POLLD%d" % n)
    E("s_sleep 1"); E("s_branch POLL%d" % n)
    L("POLLD%d" % n)
def gelu_setup():
    c0 = -2.0 * math.log2(math.e) * math.sqrt(2.0 / math.pi)
    E("s_mov_b32 s30, 1.0"); E("s_mov_b32 s72, %s" % f2u(c0 * 0.044715)); E("v_mov_b32 %s, %s" % (vr(vT + 8), f2u(c0)))
    E("v_lshlrev_b32 %s, 4, %s" % (vr(vT + 9), vr(vL)))
    E("s_lshl_b32 s75, s%d, 2" % sRT); E("s_add_u32 s73, s75, s%d" % sTA); E("s_xor_b32 s74, s73, 1")
    E("s_mul_i32 s73, s73, %d" % (NKS * 1024)); E("s_mul_i32 s74, s74, %d" % (NKS * 1024))
    E("s_lshl_b32 s75, s%d, 13" % sCG); E("s_lshr_b32 s76, s%d, 1" % sW); E("s_lshl_b32 s76, s76, 11")
    E("s_add_u32 s75, s75, s76"); E("s_add_u32 s76, s73, %d" % (112 * 1024))
    E("s_add_u32 s73, s73, s75"); E("s_add_u32 s74, s74, s75")
    E("s_lshl_b32 s75, s%d, 12" % sCG); E("s_add_u32 s76, s76, s75")
def dump_stamps(base):
    if OPT["STAMP"]:
        E("s_lshl_b32 s92, s2, 3"); E("s_add_u32 s92, s92, s%d" % sW); E("s_lshl_b32 s92, s92, 8"); E("s_add_u32 s92, s92, %d" % base)
        E("s_mov_b32 s%d, %d" % (S_WS + 2, 1 << 26)); E("v_lshlrev_b32 v1, 2, v%d" % vL)
        E("buffer_store_dword v0, v1, %s, s92 offen" % sr(S_WS, 4))

def k1():
    L(NAME + "_kernel")
    E("s_cmp_ge_u32 s2, 256"); E("s_cbranch_scc1 K1_END")
    E("s_add_u32 s2, s2, 224"); E("s_and_b32 s2, s2, 255")
    load_args()
    E("v_lshrrev_b32 v2, 6, v0"); E("v_and_b32 v%d, 63, v0" % vL); E("v_readfirstlane_b32 s%d, v2" % sW)
    if OPT["STAMP"]: E("s_nop 1"); E("v_mov_b32 v0, 0")
    E("s_waitcnt lgkmcnt(0)")
    stamp(0)
    srd(S_X, P_X, XN); srd(S_WS, P_WS, WS_SZ)
    E("s_cmp_ge_u32 s2, 224"); E("s_cbranch_scc1 K1_PREP")
    E("s_and_b32 s71, s2, 7"); E("s_lshr_b32 s72, s2, 3")
    if OPT["MAP1"] == "4x7":
        E("s_lshr_b32 s73, s71, 1"); E("s_lshl_b32 s73, s73, 2"); E("s_and_b32 s74, s72, 3"); E("s_add_u32 s%d, s73, s74" % sRT)
        E("s_and_b32 s73, s71, 1"); E("s_mul_i32 s73, s73, 7"); E("s_lshr_b32 s74, s72, 2"); E("s_add_u32 s%d, s73, s74" % sCG)
    else:
        E("s_lshl_b32 s73, s71, 1"); E("s_and_b32 s74, s72, 1"); E("s_add_u32 s%d, s73, s74" % sRT); E("s_lshr_b32 s%d, s72, 1" % sCG)
    E("s_cmp_lt_u32 s%d, 4" % sW)
    E("s_cselect_b32 s%d, s%d, s%d" % (S_B, P_BRE, P_BIM)); E("s_cselect_b32 s%d, s%d, s%d" % (S_B + 1, P_BRE + 1, P_BIM + 1))
    E("s_cselect_b32 s%d, s%d, s%d" % (S_W, P_WG, P_WU)); E("s_cselect_b32 s%d, s%d, s%d" % (S_W + 1, P_WG + 1, P_WU + 1))
    E("s_and_b32 s%d, s%d, 0xffff" % (S_B + 1, S_B + 1)); E("s_mov_b32 s%d, %d" % (S_B + 2, BN)); E("s_mov_b32 s%d, 0x20000" % (S_B + 3))
    E("s_and_b32 s%d, s%d, 0xffff" % (S_W + 1, S_W + 1)); E("s_mov_b32 s%d, %d" % (S_W + 2, WN)); E("s_mov_b32 s%d, 0x20000" % (S_W + 3))
    E("s_lshl_b32 s%d, s%d, 11" % (sM1, sW)); E("s_lshl_b32 s%d, s%d, 10" % (sM2, sW))
    E("s_and_b32 s71, s%d, 1" % sW); E("s_lshl_b32 s71, s71, 1"); E("s_bfe_u32 s72, s%d, 0x10001" % sW); E("s_add_u32 s%d, s71, s72" % sTA)
    T = vT
    C("DMA source offsets")
    E("s_movk_i32 s77, 896")
    for m, dst in ((0, vXD0), (1, vXD1)):
        E("v_lshrrev_b32 %s, 3, %s" % (vr(T), vr(vL)))
        E("s_lshl_b32 s71, s%d, 4" % sW); E("s_add_u32 s71, s71, %d" % (8 * m)); E("v_add_u32 %s, s71, %s" % (vr(T), vr(T)))
        E("v_and_b32 %s, 31, %s" % (vr(T + 1), vr(T)))
        perm(T + 2, T + 1, T + 3)
        E("v_and_b32 %s, 96, %s" % (vr(T), vr(T))); E("v_add_u32 %s, %s, %s" % (vr(T), vr(T), vr(T + 2)))
        E("s_lshl_b32 s71, s%d, 7" % sRT); E("v_add_u32 %s, s71, %s" % (vr(T), vr(T)))
        E("v_mul_lo_u32 %s, %s, s77" % (vr(T), vr(T)))
        E("v_bfe_u32 %s, %s, 1, 3" % (vr(T + 1), vr(T + 1))); E("v_and_b32 %s, 7, %s" % (vr(T + 2), vr(vL)))
        E("v_xor_b32 %s, %s, %s" % (vr(T + 1), vr(T + 1), vr(T + 2))); E("v_lshl_add_u32 %s, %s, 4, %s" % (vr(dst), vr(T + 1), vr(T)))
    E("v_lshrrev_b32 %s, 3, %s" % (vr(T), vr(vL))); E("s_and_b32 s72, s%d, 3" % sW); E("s_lshl_b32 s71, s72, 3")
    E("v_add_u32 %s, s71, %s" % (vr(T), vr(T))); E("v_bfe_u32 %s, %s, 1, 3" % (vr(T + 1), vr(T)))
    E("s_lshl_b32 s71, s%d, 5" % sCG); E("v_add_u32 %s, s71, %s" % (vr(T), vr(T))); E("v_mul_lo_u32 %s, %s, s77" % (vr(T), vr(T)))
    E("v_xor_b32 %s, %s, %s" % (vr(T + 1), vr(T + 1), vr(T + 2))); E("v_lshl_add_u32 %s, %s, 4, %s" % (vr(vBD), vr(T + 1), vr(T)))
    E("v_lshrrev_b32 %s, 4, %s" % (vr(T), vr(vL))); E("v_and_b32 %s, 15, %s" % (vr(T + 1), vr(vL)))
    E("v_lshlrev_b32 %s, 2, %s" % (vr(T + 2), vr(T))); E("v_xor_b32 %s, %s, %s" % (vr(T + 1), vr(T + 1), vr(T + 2)))
    E("v_mul_u32_u24 %s, 3584, %s" % (vr(T), vr(T))); E("v_lshl_add_u32 %s, %s, 4, %s" % (vr(T), vr(T + 1), vr(T)))
    E("s_mul_i32 s71, s72, %d" % (8 * 3584)); E("s_lshl_b32 s73, s%d, 8" % sCG); E("s_add_u32 s71, s71, s73")
    E("v_add_u32 %s, s71, %s" % (vr(vWD), vr(T)))
    C("SSM parameter loads (p = cg*32 + (l&31))")
    E("v_and_b32 %s, 31, %s" % (vr(T), vr(vL))); E("s_lshl_b32 s71, s%d, 5" % sCG)
    E("v_add_lshl_u32 %s, %s, s71, 1" % (vr(T + 10), vr(T)))
    for p, d in ((P_LRE, T + 11), (P_LIM, T + 12), (P_LDT, T + 13)):
        E("global_load_ushort %s, %s, %s" % (vr(d), vr(T + 10), sr(p, 2)))
    for j in range(4): dma_group(j)
    C("LDS fragment read addresses")
    E("v_lshrrev_b32 %s, 5, %s" % (vr(T + 1), vr(vL))); E("v_bfe_u32 %s, %s, 1, 3" % (vr(T + 2), vr(T)))
    E("s_lshl_b32 s71, s%d, 12" % sTA); E("s_xor_b32 s72, s71, 4096")
    for ks in range(4):
        E("v_add_u32 %s, %d, %s" % (vr(T + 3), 2 * ks, vr(T + 1))); E("v_xor_b32 %s, %s, %s" % (vr(T + 3), vr(T + 3), vr(T + 2)))
        E("v_lshlrev_b32 %s, 4, %s" % (vr(T + 3), vr(T + 3))); E("v_lshl_add_u32 %s, %s, 7, %s" % (vr(T + 3), vr(T), vr(T + 3)))
        E("v_add_u32 %s, s71, %s" % (vr(vXA + ks), vr(T + 3))); E("v_add_u32 %s, s72, %s" % (vr(vXB + ks), vr(T + 3)))
        E("v_add_u32 %s, 16384, %s" % (vr(vBA + ks), vr(T + 3)))
    E("v_bfe_u32 %s, %s, 2, 2" % (vr(T + 2), vr(vL)))
    E("v_lshl_add_u32 %s, %s, 3, %s" % (vr(T + 3), vr(T + 1), vr(T + 2)))
    E("v_lshlrev_b32 %s, 8, %s" % (vr(T + 3), vr(T + 3))); E("s_lshr_b32 s71, s%d, 1" % sW)
    E("v_xor_b32 %s, s71, %s" % (vr(T + 2), vr(T + 2))); E("v_lshl_add_u32 %s, %s, 6, %s" % (vr(T + 3), vr(T + 2), vr(T + 3)))
    E("v_bfe_u32 %s, %s, 4, 1" % (vr(T + 2), vr(vL))); E("v_lshl_add_u32 %s, %s, 5, %s" % (vr(T + 3), vr(T + 2), vr(T + 3)))
    E("v_and_b32 %s, 3, %s" % (vr(T + 2), vr(vL))); E("v_lshl_add_u32 %s, %s, 3, %s" % (vr(T + 3), vr(T + 2), vr(T + 3)))
    E("v_add_u32 %s, %d, %s" % (vr(vWA0), WS0, vr(T + 3))); E("v_add_u32 %s, %d, %s" % (vr(vWA1), WS0 + 49152, vr(T + 3)))
    srd(S_DBG, P_DBG, 256); p2_setup()
    E("s_and_b32 s71, s2, 7"); E("s_lshl_b32 s71, s71, 7"); E("s_add_u32 s71, s71, %d" % FL0); E("s_lshl_b32 s72, s2, 7"); E("s_and_b32 s72, s72, 128")
    E("s_cmp_eq_u32 s%d, 4" % sW); E("s_cselect_b32 s71, s71, 0x7f000000"); E("s_cselect_b32 s72, s72, 0x7f000000")
    E("v_and_b32 v45, 31, v%d" % vL); E("v_lshl_add_u32 v45, v45, 2, s71"); E("v_mov_b32 v44, s72"); E("v_lshlrev_b32 v%d, 4, v%d" % (vP2W, vL))
    E("s_cmp_ge_u32 s%d, 4" % sW); E("s_cbranch_scc1 K1_PLAIN")
    E("s_waitcnt vmcnt(14)")
    a, b, d = T + 11, T + 12, T + 13
    for r in (a, b, d): E("v_lshlrev_b32 %s, 16, %s" % (vr(r), vr(r)))
    E("v_mul_f32 %s, %s, %s" % (vr(d), f2u(math.log2(math.e)), vr(d))); E("v_exp_f32 %s, %s" % (vr(d), vr(d))); E("s_nop 0")
    E("v_cvt_pk_bf16_f32 %s, %s, %s" % (vr(d), vr(d), vr(d))); E("v_lshlrev_b32 %s, 16, %s" % (vr(d), vr(d)))
    E("v_mul_f32 %s, %s, %s" % (vr(T), vr(d), vr(a))); E("v_mul_f32 %s, %s, %s" % (vr(T + 1), vr(d), vr(b)))
    E("v_mul_f32 %s, %s, %s" % (vr(T), f2u(math.log2(math.e)), vr(T))); E("v_mul_f32 %s, %s, %s" % (vr(T + 1), f2u(0.5 / math.pi), vr(T + 1)))
    E("v_rndne_f32 %s, %s" % (vr(T + 2), vr(T + 1))); E("v_sub_f32 %s, %s, %s" % (vr(T + 1), vr(T + 1), vr(T + 2)))
    E("v_exp_f32 %s, %s" % (vr(T), vr(T))); E("v_cos_f32 %s, %s" % (vr(T + 2), vr(T + 1))); E("v_sin_f32 %s, %s" % (vr(T + 3), vr(T + 1))); E("s_nop 0")
    E("v_mul_f32 %s, %s, %s" % (vr(vLR), vr(T), vr(T + 2))); E("v_mul_f32 %s, %s, %s" % (vr(vLI), vr(T), vr(T + 3)))
    C("coef = 2*(lam-1)/Lam")
    E("v_add_f32 %s, -1.0, %s" % (vr(T), vr(vLR))); E("v_mul_f32 %s, %s, %s" % (vr(T + 1), vr(a), vr(a)))
    E("v_fma_f32 %s, %s, %s, %s" % (vr(T + 1), vr(b), vr(b), vr(T + 1))); E("v_rcp_f32 %s, %s" % (vr(T + 1), vr(T + 1)))
    E("v_mul_f32 %s, %s, %s" % (vr(vCR), vr(T), vr(a))); E("v_mul_f32 %s, %s, %s" % (vr(vCI), vr(vLI), vr(a)))
    E("v_fma_f32 %s, %s, %s, %s" % (vr(vCR), vr(vLI), vr(b), vr(vCR))); E("v_fma_f32 %s, -%s, %s, %s" % (vr(vCI), vr(T), vr(b), vr(vCI)))
    E("v_add_f32 %s, %s, %s" % (vr(T + 1), vr(T + 1), vr(T + 1)))
    E("v_mul_f32 %s, %s, %s" % (vr(vCR), vr(vCR), vr(T + 1))); E("v_mul_f32 %s, %s, %s" % (vr(vCI), vr(vCI), vr(T + 1)))
    cmul(T, T + 1, vLR, vLI, vLR, vLI); cmul(T + 2, T + 3, T, T + 1, T, T + 1); cmul(T, T + 1, T + 2, T + 3, T + 2, T + 3)
    cmul(vL16R, vL16I, T, T + 1, T, T + 1)
    cmul(T, T + 1, vL16R, vL16I, vL16R, vL16I); cmul(T + 2, T + 3, T, T + 1, T, T + 1); cmul(vL128R, vL128I, T + 2, T + 3, T + 2, T + 3)
    stamp(1)
    main_loop(True)
    stamp(2)
    gelu_setup()
    E("v_mov_b32 v%d, %d" % (T + 11, NLO)); E("ds_read_b32 v%d, v%d" % (T + 11, T + 11))
    C("pass 1: end state of this lane's 16 steps")
    H = [T, T + 2]
    cfma(H[1], H[1] + 1, vLR, vLI, ASR, ASI, ASR + 1, ASI + 1)
    for j in range(2, 16):
        cfma(H[j & 1], H[j & 1] + 1, vLR, vLI, H[(j - 1) & 1], H[(j - 1) & 1] + 1, ASR + j, ASI + j)
    E("v_and_b32 %s, 31, %s" % (vr(T + 4), vr(vL))); E("v_lshlrev_b32 %s, 3, %s" % (vr(T + 4), vr(T + 4)))
    E("s_lshl_b32 s71, s%d, 9" % sTA); E("s_add_u32 s71, s71, %d" % EXO)
    E("v_lshl_add_u32 %s, %s, 3, s71" % (vr(T + 5), vr(vL)))
    E("ds_write_b64 %s, %s" % (vr(T + 5), vr(H[1], 2)))
    E("v_add_u32 %s, %d, %s" % (vr(T + 5), EXO, vr(T + 4)))
    E("s_waitcnt lgkmcnt(0)"); E("s_barrier")
    for s in range(8): E("ds_read_b64 %s, %s offset:%d" % (vr(vEE + 2 * s, 2), vr(T + 5), s * 256))
    E("s_lshl_b32 s78, s%d, 13" % sCG); E("s_add_u32 s78, s78, %d" % E0); E("s_add_u32 s79, s78, 4096")
    E("v_mov_b32 %s, %s" % (vr(T + 10), vr(T + 4))); E("v_lshlrev_b32 %s, 1, %s" % (vr(T + 12), vr(T + 4)))
    E("v_readfirstlane_b32 s38, v%d" % (T + 11))
    E("s_cmp_lg_u32 s%d, 0" % sW); E("s_cbranch_scc1 K1_NOPUB")
    E("s_waitcnt lgkmcnt(0)")
    cfma(H[1], H[1] + 1, vL16R, vL16I, vEE, vEE + 1, vEE + 2, vEE + 3)
    for s in range(2, 8):
        cfma(H[s & 1], H[s & 1] + 1, vL16R, vL16I, H[(s - 1) & 1], H[(s - 1) & 1] + 1, vEE + 2 * s, vEE + 2 * s + 1)
    E("s_lshl_b32 s71, s%d, 9" % sRT); E("s_add_u32 s71, s71, s78")
    E("v_mov_b32 %s, %s" % (vr(T + 4), vr(H[1]))); E("v_mov_b32 %s, s38" % vr(T + 5)); E("v_mov_b32 %s, %s" % (vr(T + 6), vr(H[1] + 1))); E("v_mov_b32 %s, s38" % vr(T + 7))
    E("buffer_store_dwordx4 %s, %s, %s, s71 offen sc1" % (vr(T + 4, 4), vr(T + 12), sr(S_WS, 4)))
    L("K1_NOPUB")
    C("gate values for this lane's 16 steps -> v2..v17")
    E("v_lshrrev_b32 v18, 5, v%d" % vL); E("v_lshlrev_b32 v18, 6, v18"); E("s_lshl_b32 s71, s%d, 2" % sRT); E("s_add_u32 s71, s71, s%d" % sTA)
    E("s_lshl_b32 s71, s71, 7"); E("s_add_u32 s71, s71, %d" % G0)
    for q in range(4): E("buffer_load_dwordx4 %s, v18, %s, s71 offen offset:%d sc1" % (vr(2 + 4 * q, 4), sr(S_WS, 4), 16 * q))
    stamp(3)
    gelu_calc(0); gelu_calc(1)
    stamp(4)
    C("look-back")
    RC = [64 + 4 * c if c < 8 else 128 + 4 * (c - 8) for c in range(15)]
    E("s_mov_b32 s81, 0")
    L("K1_LBP")
    for c in range(15):
        E("s_cmp_le_u32 s%d, %d" % (sRT, c)); E("s_cbranch_scc1 K1_LBL")
        E("buffer_load_dwordx4 %s, %s, %s, s%d offen offset:%d sc1" % (vr(RC[c], 4), vr(T + 12), sr(S_WS, 4), 78 + c // 8, (c % 8) * 512))
    L("K1_LBL")
    E("v_mov_b32 %s, 0" % vr(T + 6)); E("s_waitcnt vmcnt(0)")
    for c in range(15):
        E("s_cmp_le_u32 s%d, %d" % (sRT, c)); E("s_cbranch_scc1 K1_LBC")
        E("v_xor_b32 %s, s38, %s" % (vr(T + 7), vr(RC[c] + 1))); E("v_xor_b32 %s, s38, %s" % (vr(T), vr(RC[c] + 3)))
        E("v_or3_b32 %s, %s, %s, %s" % (vr(T + 6), vr(T + 6), vr(T + 7), vr(T)))
    L("K1_LBC")
    E("v_cmp_ne_u32 vcc, 0, %s" % vr(T + 6)); E("s_nop 4"); E("s_or_b32 s71, vcc_lo, vcc_hi"); E("s_cbranch_scc0 K1_LBK")
    E("s_add_u32 s81, s81, 1"); E("s_cmp_gt_u32 s81, 0x10000"); E("s_cbranch_scc1 K1_LBK")
    E("s_sleep 1"); E("s_branch K1_LBP")
    L("K1_LBK")
    stamp(9)
    gelu_st(0); gelu_st(1)
    E("v_mov_b32 %s, 0" % vr(T)); E("v_mov_b32 %s, 0" % vr(T + 1))
    E("v_lshrrev_b32 %s, 5, %s" % (vr(T + 6), vr(vL))); E("s_lshl_b32 s71, s%d, 1" % sTA); E("v_add_u32 %s, s71, %s" % (vr(T + 6), vr(T + 6)))
    E("s_waitcnt lgkmcnt(0)")
    E("s_cmp_eq_u32 s%d, 0" % sRT); E("s_cbranch_scc1 K1_LBD")
    for c in range(1, 15):
        E("s_cmp_le_u32 s%d, %d" % (sRT, c)); E("s_cbranch_scc1 K1_LX%d" % c)
        cfma(RC[c], RC[c] + 2, vL128R, vL128I, RC[c - 1], RC[c - 1] + 2, RC[c], RC[c] + 2)
    E("v_mov_b32 %s, %s" % (vr(T), vr(RC[14]))); E("v_mov_b32 %s, %s" % (vr(T + 1), vr(RC[14] + 2)))
    L("K1_LBD")
    for s in range(7):
        E("v_cmp_lt_u32 vcc, %d, %s" % (s, vr(T + 6)))
        cfma(T + 2, T + 3, vL16R, vL16I, T, T + 1, vEE + 2 * s, vEE + 2 * s + 1)
        E("v_cndmask_b32 %s, %s, %s, vcc" % (vr(T), vr(T), vr(T + 2))); E("v_cndmask_b32 %s, %s, %s, vcc" % (vr(T + 1), vr(T + 1), vr(T + 3)))
    C("pass 2")
    if OPT["EARLY"]:
        for i in (13, 14): p2_load('W', i, WSL[i], vP2W)
    for j in range(16):
        hr, hi = (T, T + 1) if j == 0 else (ASR + j - 1, ASI + j - 1)
        cfma(ASR + j, ASI + j, vLR, vLI, hr, hi, ASR + j, ASI + j)
    OR_, OI = vEC, vEC + 8
    for j in range(0, 16, 2):
        P = lambda b: vr(b, 2)
        E("v_pk_mul_f32 %s, %s, %s op_sel_hi:[0,1]" % (P(T + 4), P(vCR), P(2 + j)))
        E("v_pk_mul_f32 %s, %s, %s op_sel:[1,0]" % (P(T + 6), P(vCR), P(2 + j)))
        E("v_pk_mul_f32 %s, %s, %s" % (P(T), P(T + 4), P(ASR + j))); E("v_pk_mul_f32 %s, %s, %s" % (P(T + 2), P(T + 4), P(ASI + j)))
        E("v_pk_fma_f32 %s, %s, %s, %s neg_lo:[1,0,0] neg_hi:[1,0,0]" % (P(T), P(T + 6), P(ASI + j), P(T)))
        E("v_pk_fma_f32 %s, %s, %s, %s neg_lo:[1,0,1] neg_hi:[1,0,1]" % (P(T + 2), P(T + 6), P(ASR + j), P(T + 2)))
        E("v_cvt_pk_bf16_f32 %s, %s, %s" % (vr(OR_ + j // 2), vr(T), vr(T + 1)))
        E("v_cvt_pk_bf16_f32 %s, %s, %s" % (vr(OI + j // 2), vr(T + 2), vr(T + 3)))
    C("transpose through LDS: rows k (re p, im p) of 64 B (32 t)")
    E("s_lshl_b32 s71, s%d, 12" % sW); E("s_add_u32 s71, s71, %d" % TRO)
    E("v_lshrrev_b32 %s, 5, %s" % (vr(T), vr(vL))); E("v_lshlrev_b32 %s, 5, %s" % (vr(T + 1), vr(T)))
    E("v_lshl_add_u32 %s, %s, 3, %s" % (vr(T + 1), vr(T + 10), vr(T + 1))); E("v_add_u32 %s, s71, %s" % (vr(T + 1), vr(T + 1)))
    E("ds_write_b128 %s, %s" % (vr(T + 1), vr(OR_, 4))); E("ds_write_b128 %s, %s offset:16" % (vr(T + 1), vr(OR_ + 4, 4)))
    E("ds_write_b128 %s, %s offset:2048" % (vr(T + 1), vr(OI, 4))); E("ds_write_b128 %s, %s offset:2064" % (vr(T + 1), vr(OI + 4, 4)))
    E("v_bfe_u32 %s, %s, 2, 2" % (vr(T + 2), vr(vL))); E("v_lshl_add_u32 %s, %s, 3, %s" % (vr(T + 2), vr(T), vr(T + 2)))
    E("v_lshlrev_b32 %s, 6, %s" % (vr(T + 2), vr(T + 2)))
    E("v_and_b32 %s, 1, %s" % (vr(T + 3), vr(vL))); E("v_lshl_add_u32 %s, %s, 5, %s" % (vr(T + 2), vr(T + 3), vr(T + 2)))
    E("v_bfe_u32 %s, %s, 4, 1" % (vr(T + 3), vr(vL))); E("v_lshl_add_u32 %s, %s, 4, %s" % (vr(T + 2), vr(T + 3), vr(T + 2)))
    E("v_bfe_u32 %s, %s, 1, 1" % (vr(T + 3), vr(vL))); E("v_lshl_add_u32 %s, %s, 3, %s" % (vr(T + 2), vr(T + 3), vr(T + 2)))
    E("v_add_u32 %s, s71, %s" % (vr(T + 2), vr(T + 2)))
    E("s_waitcnt lgkmcnt(0)")
    if OPT["EARLY"]: p2_load('W', 12, WSL[12], vP2W)
    for q in range(4):
        E("ds_read_b64_tr_b16 %s, %s offset:%d" % (vr(ASR + 4 * q, 2), vr(T + 2), q * 1024))
        E("ds_read_b64_tr_b16 %s, %s offset:%d" % (vr(ASR + 4 * q + 2, 2), vr(T + 2), q * 1024 + 256))
    for q in range(4):
        E("s_waitcnt lgkmcnt(%d)" % (6 - 2 * q))
        E("buffer_store_dwordx4 %s, %s, %s, s76 offen offset:%d%s" % (vr(ASR + 4 * q, 4), vr(vT + 9), sr(S_WS, 4), q * 1024, SC))
    stamp(13)
    E("s_branch K1_JOIN")
    spins()
    for c in range(1, 15):
        L("K1_LX%d" % c); E("v_mov_b32 %s, %s" % (vr(T), vr(RC[c - 1]))); E("v_mov_b32 %s, %s" % (vr(T + 1), vr(RC[c - 1] + 2))); E("s_branch K1_LBD")
    L("K1_PLAIN")
    stamp(1)
    pc = main_loop(False)
    stamp(2)
    gelu_setup()
    for i in range(12, 15): p2_load('W', i, WSL[i], vP2W)
    E("s_waitcnt vmcnt(%d)" % (pc + 6)); w4_check("v_cmp_eq_u32 vcc, s38, v47", "G")
    E("s_barrier")
    stamp(3)
    ex = [(i, j, vP2W, o) for i in range(15, 21) for j in range(2) for o in range(2)] if OPT["PACE"] else None
    gelu_calc(0, ex); gelu_st(0); gelu_calc(1, ex); gelu_st(1)
    stamp(4)
    L("K1_JOIN")
    E("s_waitcnt vmcnt(0)"); stamp(14); E("s_barrier")
    stamp(5)
    E("v_mov_b32 v2, v%d" % vP2W)
    E("s_cmp_lg_u32 s%d, 4" % sW); E("s_cbranch_scc1 K1_NOPOLL")
    E("s_lshl_b32 s80, s%d, 7" % sRT); E("s_add_u32 s80, s80, %d" % (FL0 + 2048)); E("s_lshl_b32 s71, s%d, 2" % sCG)
    E("v_mov_b32 v3, s71"); E("v_mov_b32 v4, s38")
    E("buffer_store_dword v4, v3, %s, s80 offen sc1" % sr(S_WS, 4))
    E("v_and_b32 v5, 15, v%d" % vL); E("v_lshlrev_b32 v5, 2, v5")
    poll("buffer_load_dword v6, v5, %s, s80 offen sc1" % sr(S_WS, 4), "v_cmp_eq_u32 vcc, s38, v6", "0x3fff")
    stamp(15)
    L("K1_NOPOLL")
    E("s_cmp_ge_u32 s%d, 4" % sW); E("s_cbranch_scc1 K1_NOW")
    for i in range(8, 12 if OPT["EARLY"] else 15): p2_load('W', i, WSL[i], 2)
    L("K1_NOW")
    if not OPT["PACE"]:
        for i in range(15, 21):
            for j in range(2): lds_w(i, j, 2, 0)
    p2_main()
    L("K1_PREP")
    E("s_sub_u32 s70, s2, 224"); E("s_lshl_b32 s65, s%d, 5" % sW); E("s_add_u32 s65, s65, s70")
    E("s_lshl_b32 s70, s70, 3"); E("s_add_u32 s70, s70, s%d" % sW)
    srd(S_T, P_GW, 896)
    E("v_lshrrev_b32 v2, 3, v1"); E("s_lshl_b32 s71, s70, 3"); E("v_add_u32 v2, s71, v2")
    E("v_and_b32 v3, 7, v1"); E("v_lshlrev_b32 v3, 4, v3"); E("v_mul_u32_u24 v4, 896, v2"); E("v_add_u32 v4, v4, v3")
    E("v_lshlrev_b32 v5, 4, v1"); E("v_and_b32 v122, 7, v1"); E("v_lshlrev_b32 v122, 7, v122"); E("s_mov_b32 s38, %d" % FL0)
    E("s_cmp_ge_u32 s65, 224"); E("s_cbranch_scc1 K1_PN")
    E("s_cmp_ge_u32 s65, 112"); E("s_cbranch_scc1 K1_PC")
    C("W_down k-step s65 -> fragments")
    srd(S_W, P_WD, WN)
    E("s_mul_i32 s71, s65, 14336"); E("s_mul_i32 s72, s%d, 14336" % sW)
    for i in range(14):
        E("s_add_u32 m0, s72, %d" % (i * 1024)); E("s_add_u32 s73, s71, %d" % (i * 1024))
        E("buffer_load_dwordx4 v5, %s, s73 offen lds" % sr(S_W, 4))
    E("v_lshrrev_b32 v6, 5, v1"); E("v_bfe_u32 v7, v1, 2, 2"); E("v_lshl_add_u32 v6, v6, 2, v7"); E("v_mul_u32_u24 v6, 896, v6")
    E("v_bfe_u32 v7, v1, 4, 1"); E("v_lshl_add_u32 v6, v7, 5, v6"); E("v_and_b32 v7, 3, v1"); E("v_lshl_add_u32 v6, v7, 3, v6")
    E("v_add_u32 v6, s72, v6"); E("s_lshl_b32 s71, s65, 10"); E("s_add_u32 s71, s71, %d" % WB0)
    E("s_waitcnt vmcnt(0)")
    for nb in range(14):
        E("ds_read_b64_tr_b16 %s, v6 offset:%d" % (vr(64 + 4 * nb, 2), nb * 64))
        E("ds_read_b64_tr_b16 %s, v6 offset:%d" % (vr(66 + 4 * nb, 2), nb * 64 + 8 * 896))
    E("s_waitcnt lgkmcnt(0)")
    for nb in range(14):
        E("buffer_store_dwordx4 %s, v5, %s, s71 offen sc1" % (vr(64 + 4 * nb, 4), sr(S_WS, 4))); E("s_add_u32 s71, s71, %d" % (NKS * 1024))
    E("s_branch K1_PG")
    L("K1_PC")
    E("s_sub_u32 s66, s65, 112"); E("s_lshr_b32 s67, s66, 3"); E("s_bfe_u32 s68, s66, 0x10002"); E("s_and_b32 s69, s66, 3")
    E("s_cmp_eq_u32 s68, 0")
    E("s_cselect_b32 s%d, s%d, s%d" % (S_B, P_CRE, P_CIM)); E("s_cselect_b32 s%d, s%d, s%d" % (S_B + 1, P_CRE + 1, P_CIM + 1))
    E("s_and_b32 s%d, s%d, 0xffff" % (S_B + 1, S_B + 1)); E("s_mov_b32 s%d, %d" % (S_B + 2, BN)); E("s_mov_b32 s%d, 0x20000" % (S_B + 3))
    E("v_and_b32 v6, 31, v1"); E("s_lshl_b32 s71, s67, 5"); E("v_add_u32 v6, s71, v6"); E("v_mul_u32_u24 v6, 896, v6")
    E("v_lshrrev_b32 v7, 5, v1"); E("v_lshl_add_u32 v6, v7, 4, v6")
    E("s_mul_i32 s69, s69, 7"); E("s_lshl_b32 s71, s69, 5")
    for i in range(7): E("buffer_load_dwordx4 %s, v6, %s, s71 offen offset:%d" % (vr(64 + 4 * i, 4), sr(S_B, 4), i * 32))
    E("s_mul_i32 s72, s67, %d" % NKS); E("s_lshl_b32 s68, s68, 1"); E("s_add_u32 s72, s72, s68"); E("s_add_u32 s72, s72, %d" % (112 + WB0 // 1024))
    E("s_waitcnt vmcnt(0)")
    for i in range(7):
        E("s_add_u32 s73, s69, %d" % i); E("s_lshr_b32 s74, s73, 1"); E("s_lshl_b32 s74, s74, 2"); E("s_and_b32 s73, s73, 1")
        E("s_add_u32 s73, s73, s74"); E("s_add_u32 s73, s73, s72"); E("s_lshl_b32 s73, s73, 10")
        E("buffer_store_dwordx4 %s, v5, %s, s73 offen sc1" % (vr(64 + 4 * i, 4), sr(S_WS, 4)))
    E("s_branch K1_PG")
    L("K1_PN")
    srd(S_DBG, P_DBG, 256); E("v_mov_b32 v44, 0"); E("s_mov_b32 s71, %d" % FL0)
    E("s_cmp_lg_u32 s2, 224"); E("s_cbranch_scc1 K1_PN1")
    E("buffer_load_dword v42, v44, %s, s71 offen sc1" % sr(S_WS, 4)); E("v_and_b32 v44, 1, v1"); E("v_lshlrev_b32 v44, 7, v44"); E("v_mov_b32 v43, 1")
    E("s_waitcnt vmcnt(0)"); E("v_add_u32 v42, 0x9e3779b9, v42"); E("buffer_store_dwordx2 v[42:43], v44, %s, 0 offen sc1" % sr(S_DBG, 4))
    E("s_branch K1_PN2")
    L("K1_PN1")
    poll(LD_N, "v_cmp_eq_u32 vcc, 1, v43", "-1")
    L("K1_PN2")
    E("v_mov_b32 v123, v42")
    E("s_sub_u32 s38, s2, 224"); E("s_lshl_b32 s38, s38, 2"); E("s_add_u32 s38, s38, %d" % FL0)
    L("K1_PG")
    for i in range(7):
        E("buffer_load_dwordx4 %s, v4, %s, 0 offen offset:%d" % (vr(8 + 4 * i, 4), sr(S_X, 4), i * 128))
        E("buffer_load_dwordx4 %s, v3, %s, 0 offen offset:%d" % (vr(36 + 4 * i, 4), sr(S_T, 4), i * 128))
    E("s_waitcnt vmcnt(14)"); E("s_barrier")
    stamp(4)
    E("s_cmp_lg_u32 s%d, 7" % sW); E("s_cbranch_scc1 K1_PF")
    E("buffer_store_dword v123, v122, %s, s38 offen sc1" % sr(S_WS, 4))
    L("K1_PF")
    E("s_waitcnt vmcnt(0)")
    E("v_mov_b32 v6, 0"); E("v_mov_b32 v7, 0"); E("s_mov_b32 s71, 0xffff0000")
    for i in range(28):
        x, w = 8 + i, 36 + i
        E("v_lshlrev_b32 v124, 16, v%d" % x); E("v_and_b32 v125, s71, v%d" % x); E("v_lshlrev_b32 v126, 16, v%d" % w); E("v_and_b32 v127, s71, v%d" % w)
        E("v_mul_f32 v124, v124, v126"); E("v_mul_f32 v125, v125, v127"); E("v_cvt_pk_bf16_f32 v124, v124, v125")
        E("v_lshlrev_b32 v125, 16, v124"); E("v_and_b32 v124, s71, v124"); E("v_add_f32 v6, v6, v125"); E("v_add_f32 v7, v7, v124")
    E("v_add_f32 v6, v6, v7")
    for o in ("0x041F", "0x081F", "0x101F"):
        E("ds_swizzle_b32 v7, v6 offset:%s" % o); E("s_waitcnt lgkmcnt(0)"); E("v_add_f32 v6, v6, v7")
    E("v_cvt_pk_bf16_f32 v6, v6, v6"); E("v_lshlrev_b32 v6, 16, v6"); E("v_mul_f32 v6, %s, v6" % f2u(-math.log2(math.e)))
    E("v_exp_f32 v6, v6"); E("s_nop 0"); E("v_add_f32 v6, 1.0, v6"); E("v_rcp_f32 v6, v6"); E("s_nop 0")
    E("v_cvt_pk_bf16_f32 v6, v6, v6"); E("v_lshlrev_b32 v6, 16, v6"); E("v_lshlrev_b32 v2, 2, v2"); E("s_mov_b32 s71, %d" % G0)
    E("buffer_store_dword v6, v2, %s, s71 offen sc1" % sr(S_WS, 4))
    E("s_waitcnt vmcnt(0)"); E("s_barrier")
    E("s_cmp_lg_u32 s%d, 7" % sW); E("s_cbranch_scc1 K1_PE")
    E("buffer_store_dword v123, v122, %s, s38 offen offset:1024 sc1" % sr(S_WS, 4))
    L("K1_PE")
    stamp(5); dump_stamps(1 << 25)
    L("K1_END")
    E("s_endpgm")

def p2_main():
    C("phase 2")
    srd(S_T, P_D, 896); srd(S_B, P_OUT, 2048 * 448 * 4)
    E("v_and_b32 v4, 31, v1"); perm(5, 4, 6); E("s_lshl_b32 s73, s94, 6"); E("v_add_lshl_u32 v5, v5, s73, 2"); E("s_mov_b32 s74, %d" % G0)
    E("buffer_load_dword v8, v5, %s, s74 offen sc1" % sr(S_WS, 4)); E("buffer_load_dword v9, v5, %s, s74 offen offset:128 sc1" % sr(S_WS, 4))
    E("v_lshrrev_b32 v4, 4, v1"); E("v_and_b32 v6, 15, v1"); E("s_lshl_b32 s75, s95, 7"); E("v_lshl_add_u32 v7, v6, 3, s75")
    E("buffer_load_dwordx2 v[10:11], v7, %s, 0 offen" % sr(S_T, 4))
    E("s_and_b32 s75, s%d, 3" % sW); E("s_lshl_b32 s75, s75, 2"); E("s_lshr_b32 s76, s%d, 2" % sW); E("s_lshl_b32 s76, s76, 5")
    E("s_add_u32 s75, s75, s76"); E("s_add_u32 s75, s75, s73"); E("v_add_u32 v3, s75, v4")
    E("v_lshlrev_b32 v4, 2, v3"); E("v_mul_u32_u24 v3, 896, v3"); E("v_add_u32 v3, v3, v7"); E("s_movk_i32 s77, %d" % (16 * 896))
    E("buffer_load_dwordx2 v[12:13], v3, %s, 0 offen" % sr(S_X, 4)); E("buffer_load_dwordx2 v[14:15], v3, %s, s77 offen" % sr(S_X, 4))
    E("buffer_load_dword v6, v4, %s, s74 offen sc1" % sr(S_WS, 4)); E("buffer_load_dword v7, v4, %s, s74 offen offset:64 sc1" % sr(S_WS, 4))
    E("s_barrier")
    stamp(6)
    wreg = {i: WSL[i] for i in range(15)}; hreg = {}; order = []
    for i, R in enumerate(HSL): p2_load('H', i, R, 2); hreg[i] = R; order.append(i)
    nh = len(HSL)
    E("s_lshl_b32 s75, s%d, 14" % sW); E("v_add_u32 v5, s75, v2")
    for i in range(21):
        E("s_waitcnt vmcnt(%d)" % (2 * (len(order) - 1 - i)))
        if i == 14:
            E("v_sub_f32 v4, 1.0, v8"); E("v_sub_f32 v5, 1.0, v9"); E("v_cvt_pk_bf16_f32 v4, v4, v5")
            E("v_and_b32 v5, 0xffff0000, v4"); E("v_lshlrev_b32 v4, 16, v4"); E("s_nop 7")
            for k in range(4):
                for r in range(0, 16, 2): E("v_pk_mul_f32 %s, v[4:5], %s %s" % (vr(ACC2 + 16 * k + r, 2), vr(ACC2 + 16 * k + r, 2), "op_sel:[1,0]" if k & 1 else "op_sel_hi:[0,1]"))
            E("s_waitcnt lgkmcnt(0)"); E("s_nop 0")
        for k in range(4):
            A = ACC2 + 16 * k
            E("v_mfma_f32_32x32x16_bf16 %s, %s, %s, %s" % (vr(A, 16), vr(wreg[i] + 4 * (k >> 1), 4), vr(hreg[i] + 4 * (k & 1), 4), vr(A, 16) if i else "0"))
        for R in (hreg[i], wreg[i]):
            if nh < 21: p2_load('H', nh, R, 2); hreg[nh] = R; order.append(nh); nh += 1
        if 8 <= i < 14:
            R = wreg[i - 1]; wreg[i + 7] = R
            for j in range(2): E("ds_read_b128 %s, v5 offset:%d" % (vr(R + 4 * j, 4), (i - 8) * 2048 + j * 1024))
    stamp(7)
    C("partials -> LDS [wave][row 64][256B], chunk ^= row&7")
    E("v_and_b32 v16, 31, v1"); E("v_lshrrev_b32 v17, 5, v1"); E("v_and_b32 v18, 7, v1"); E("v_xor_b32 v17, v17, v18")
    E("s_lshl_b32 s75, s%d, 14" % sW); E("v_lshl_add_u32 v16, v16, 8, s75")
    for q in range(4):
        E("v_xor_b32 v18, %d, v17" % (2 * q)); E("v_lshl_add_u32 v%d, v18, 4, v16" % (20 + q))
    for k in range(4):
        for q in range(4): E("ds_write_b128 v%d, %s offset:%d" % (20 + q, vr(ACC2 + 16 * k + 4 * q, 4), (k & 1) * 8192 + (k >> 1) * 128))
    E("v_lshrrev_b32 v16, 4, v1"); E("s_lshl_b32 s75, s%d, 3" % sW); E("v_add_u32 v16, s75, v16"); E("v_and_b32 v18, 15, v1")
    for i in range(2):
        E("v_add_u32 v17, %d, v16" % (4 * i)); E("v_and_b32 v19, 7, v17"); E("v_xor_b32 v19, v19, v18"); E("v_lshlrev_b32 v19, 4, v19")
        E("v_lshl_add_u32 v%d, v17, 8, v19" % (24 + i)); E("v_add_u32 v%d, 65536, v%d" % (26 + i, 24 + i))
    E("v_lshlrev_b32 v3, 1, v3")
    E("v_lshlrev_b32 v16, 16, v10"); E("v_and_b32 v17, 0xffff0000, v10"); E("v_lshlrev_b32 v18, 16, v11"); E("v_and_b32 v19, 0xffff0000, v11")
    for i in range(2):
        x0, x1, S = 12 + 2 * i, 13 + 2 * i, 28 + 4 * i
        E("v_lshlrev_b32 v%d, 16, v%d" % (S, x0)); E("v_and_b32 v%d, 0xffff0000, v%d" % (S + 1, x0))
        E("v_lshlrev_b32 v%d, 16, v%d" % (S + 2, x1)); E("v_and_b32 v%d, 0xffff0000, v%d" % (S + 3, x1))
        for r in range(4): E("v_mul_f32 v%d, v%d, v%d" % (S + r, S + r, 16 + r))
        E("v_cvt_pk_bf16_f32 v%d, v%d, v%d" % (x0, S, S + 1)); E("v_cvt_pk_bf16_f32 v%d, v%d, v%d" % (x1, S + 2, S + 3))
        E("v_lshlrev_b32 v%d, 16, v%d" % (S, x0)); E("v_and_b32 v%d, 0xffff0000, v%d" % (S + 1, x0))
        E("v_lshlrev_b32 v%d, 16, v%d" % (S + 2, x1)); E("v_and_b32 v%d, 0xffff0000, v%d" % (S + 3, x1))
        for r in range(4): E("v_mul_f32 v%d, v%d, v%d" % (S + r, S + r, 6 + i))
    E("s_waitcnt lgkmcnt(0)"); E("s_barrier")
    for i in range(2):
        for sw in range(8): E("ds_read_b128 %s, v%d offset:%d" % (vr(48 + 32 * i + 4 * sw, 4), (24 if sw < 4 else 26) + i, (sw & 3) * 16384))
    for i in range(2):
        B, S = 48 + 32 * i, 28 + 4 * i
        for sw in range(8):
            if sw % 2 == 0: E("s_waitcnt lgkmcnt(%d)" % (14 - 8 * i - sw))
            for r in (0, 2): E("v_pk_add_f32 %s, %s, %s" % (vr(S + r, 2), vr(S + r, 2), vr(B + 4 * sw + r, 2)))
        E("s_mov_b32 s77, %d" % (i * 16 * 1792))
        E("buffer_store_dwordx4 %s, v3, %s, s77 offen" % (vr(S, 4), sr(S_B, 4)))
    stamp(8); dump_stamps(1 << 25)
    E("s_endpgm")

def desc(name, vg, acc):
    return [".p2align 6", ".amdhsa_kernel %s" % name, "  .amdhsa_next_free_vgpr %d" % vg, "  .amdhsa_next_free_sgpr 96",
            "  .amdhsa_accum_offset %d" % acc, "  .amdhsa_group_segment_fixed_size 0", "  .amdhsa_kernarg_size 136",
            "  .amdhsa_user_sgpr_count 2", "  .amdhsa_user_sgpr_kernarg_segment_ptr 1", "  .amdhsa_system_sgpr_workgroup_id_x 1",
            ".end_amdhsa_kernel"]
hdr = [l.rstrip("\n") for l in open("cdna_kernels/%s.s.ref" % NAME) if l.startswith(";   offset") or l.startswith("; Kernarg")]
KN = NAME + "_kernel"
hdr += ["; @launch grid=(256,1,1) block=(512,1,1) lds=163840", '.amdgcn_target "amdgcn-amd-amdhsa--gfx950"', ".text"]
k1()
body = [".globl %s" % KN, ".p2align 8", ".type %s,@function" % KN] + list(out)
tail = ['.section .rodata,"a"'] + desc(KN, 256, 256)
open(sys.argv[1], "w").write("\n".join(hdr + body + tail) + "\n")
```

```python
import sys, struct, math
NAME = "gated_mix__ssm_conv_s5__glu_gated_geglu__prompt"
OPT = dict(ROT=1, PACE=1, EARLY=1, NS=14, M16=0, TWICE=0, NOMMA=0, NODMA=0, NOLDS=0, D2=8, MAP1="4x7", STAMP=0)
for a in sys.argv[2:]:
    k, v = a.split("="); OPT[k] = int(v) if v.lstrip("-").isdigit() else v
out = []
def E(s): out.append("    " + s)
def L(s): out.append(s + ":")
def C(s): out.append("    ; " + s)
def f2u(x): return "0x%08x" % struct.unpack("<I", struct.pack("<f", x))[0]
def vr(b, n=1): return "v%d" % b if n == 1 else "v[%d:%d]" % (b, b + n - 1)
def ar(b, n=1): return "a%d" % b if n == 1 else "a[%d:%d]" % (b, b + n - 1)
def sr(b, n=1): return "s%d" % b if n == 1 else "s[%d:%d]" % (b, b + n - 1)
def srd(d, p, nbytes):
    E("s_mov_b32 s%d, s%d" % (d, p)); E("s_and_b32 s%d, s%d, 0xffff" % (d + 1, p + 1))
    E("s_mov_b32 s%d, %d" % (d + 2, nbytes)); E("s_mov_b32 s%d, 0x20000" % (d + 3))
NKS = 168
HA0 = 0; HA_SZ = 64 * NKS * 1024
WB0 = HA_SZ; WB_SZ = 14 * NKS * 1024
G0 = WB0 + WB_SZ; E0 = G0 + 8192; FL0 = E0 + 14 * 16 * 512; WS_SZ = FL0 + 4096; NLO = 157696
XN = 2048 * 448 * 2; BN = 448 * 448 * 2; WN = 448 * 1792 * 2
P_X, P_LRE, P_LIM, P_BRE, P_BIM, P_CRE, P_CIM, P_LDT = 4, 6, 8, 10, 12, 14, 16, 18
P_D, P_BX, P_WG, P_WU, P_WD, P_GW, P_OUT, P_DBG, P_WS = 20, 22, 24, 26, 28, 30, 32, 34, 36
def load_args():
    E("s_load_dwordx16 s[4:19], s[0:1], 0"); E("s_load_dwordx16 s[20:35], s[0:1], 64")
    E("s_load_dwordx2 s[36:37], s[0:1], 128")
def perm(dst, r, t1):
    E("v_and_b32 %s, 3, %s" % (vr(dst), vr(r)))
    E("v_lshrrev_b32 %s, 3, %s" % (vr(t1), vr(r)))
    E("v_lshl_add_u32 %s, %s, 2, %s" % (vr(dst), vr(t1), vr(dst)))
    E("v_bfe_u32 %s, %s, 2, 1" % (vr(t1), vr(r)))
    E("v_lshl_add_u32 %s, %s, 4, %s" % (vr(dst), vr(t1), vr(dst)))
def cmul(dr, di, ar_, ai, br, bi):
    E("v_mul_f32 %s, %s, %s" % (vr(dr), vr(ar_), vr(br))); E("v_mul_f32 %s, %s, %s" % (vr(di), vr(ar_), vr(bi)))
    E("v_fma_f32 %s, -%s, %s, %s" % (vr(dr), vr(ai), vr(bi), vr(dr))); E("v_fma_f32 %s, %s, %s, %s" % (vr(di), vr(ai), vr(br), vr(di)))
def cfma(dr, di, lr, li, hr, hi, ur, ui):
    E("v_fma_f32 %s, %s, %s, %s" % (vr(dr), vr(lr), vr(hr), vr(ur))); E("v_fma_f32 %s, %s, %s, %s" % (vr(di), vr(lr), vr(hi), vr(ui)))
    E("v_fma_f32 %s, -%s, %s, %s" % (vr(dr), vr(li), vr(hi), vr(dr))); E("v_fma_f32 %s, %s, %s, %s" % (vr(di), vr(li), vr(hr), vr(di)))
def stamp(slot):
    if OPT["STAMP"]:
        E("s_memrealtime s[90:91]"); E("s_waitcnt lgkmcnt(0)"); E("v_writelane_b32 v0, s90, %d" % slot)
        if slot in (1, 2): E("s_memtime s[90:91]"); E("s_waitcnt lgkmcnt(0)"); E("v_writelane_b32 v0, s90, %d" % (slot + 10))

S_X, S_B, S_W, S_WS, S_DBG, S_T = 40, 44, 48, 52, 56, 60
sW, sRT, sCG, sTA, sM1, sM2, sM3 = 64, 65, 66, 67, 68, 69, 70
XBS = [0, 24576, 49152]; WS0 = 73728; EXO = 155648; TRO = 131072
vL, vXD0, vXD1, vBD, vWD = 1, 2, 3, 4, 5
vXA, vXB, vBA, vWA0, vWA1 = 6, 10, 14, 18, 19
vLR, vLI, vCR, vCI, vL16R, vL16I, vL128R, vL128I = 20, 21, 22, 23, 24, 25, 26, 27
vT = 28
FR = [48, 72]
AG = [96, 112]; AU = [128, 144]; ASR, ASI = 160, 176
vEE = 48
vEC = 64
def dma_group(j):
    if j > 13 or (OPT["NODMA"] and j > 3): return
    if j % 2 == 0:
        st = j // 2; slot = XBS[st % 3]
        E("s_mov_b32 s71, %d" % (st * 128))
        E("s_add_u32 m0, s%d, %d" % (sM1, slot)); E("s_nop 0")
        E("buffer_load_dwordx4 %s, %s, s71 offen lds" % (vr(vXD0), sr(S_X, 4)))
        E("s_add_u32 m0, s%d, %d" % (sM1, slot + 1024)); E("s_nop 0")
        E("buffer_load_dwordx4 %s, %s, s71 offen lds" % (vr(vXD1), sr(S_X, 4)))
        E("s_add_u32 m0, s%d, %d" % (sM2, slot + 16384)); E("s_nop 0")
        E("buffer_load_dwordx4 %s, %s, s71 offen lds" % (vr(vBD), sr(S_B, 4)))
    for m in range(2):
        E("s_mov_b32 s71, %d" % ((32 * j + 4 * m) * 3584))
        E("s_add_u32 m0, s%d, %d" % (sM1, WS0 + (j % 5) * 16384 + m * 1024)); E("s_nop 0")
        E("buffer_load_dwordx4 %s, %s, s71 offen lds" % (vr(vWD), sr(S_W, 4)))
def dma_part(j, part):
    save = list(out); del out[:]; dma_group(0); g = list(out); out[:] = save
    rng = {0: g[0:4], 1: g[0:1] + g[4:7], 2: g[0:1] + g[7:10], 3: g[10:]}[part]
    out.extend(rng)
def gsize(j): return 0 if j > 13 else (5 if j % 2 == 0 else 2)
def frag_reads(n, ssm):
    F = FR[n & 1]; xs = XBS[(n // 4) % 3]; ks = n % 4; i = n // 2; wsl = i % 5
    wa = vWA0 if wsl < 3 else vWA1; wo = (wsl if wsl < 3 else wsl - 3) * 16384 + (n & 1) * 4096
    r = []
    r.append("ds_read_b64_tr_b16 %s, %s offset:%d" % (vr(F + 8, 2), vr(wa), wo))
    r.append("ds_read_b64_tr_b16 %s, %s offset:%d" % (vr(F + 10, 2), vr(wa), wo + 1024))
    r.append("ds_read_b128 %s, %s offset:%d" % (vr(F, 4), vr(vXA + ks), xs))
    r.append("ds_read_b128 %s, %s offset:%d" % (vr(F + 4, 4), vr(vXB + ks), xs))
    r.append("ds_read_b64_tr_b16 %s, %s offset:%d" % (vr(F + 12, 2), vr(wa), wo + 8192))
    r.append("ds_read_b64_tr_b16 %s, %s offset:%d" % (vr(F + 14, 2), vr(wa), wo + 8192 + 1024))
    if ssm:
        r.append("ds_read_b128 %s, %s offset:%d" % (vr(F + 16, 4), vr(vBA + ks), xs))
        r.append("ds_read_b128 %s, %s offset:%d" % (vr(F + 20, 4), vr(vBA + ks), xs + 4096))
    return r
def mfmas(n, ssm):
    F = FR[n & 1]
    def m(d, a, b): return "v_mfma_f32_32x32x16_bf16 %s, %s, %s, %s" % (vr(d, 16), vr(a, 4), vr(b, 4), vr(d, 16) if n else "0")
    r = [m(AG[0], F + 8, F), m(AG[1], F + 8, F + 4), m(AU[0], F + 12, F), m(AU[1], F + 12, F + 4)]
    if ssm: r += [m(ASR, F, F + 16), m(ASI, F, F + 20)]
    return r
def w4_check(cmp_, tag, post=None):
    E("s_cmp_lg_u32 s%d, 4" % sW); E("s_cbranch_scc1 CKR" + tag)
    E(cmp_); E("s_nop 4"); E("s_cmp_eq_u32 vcc_lo, -1"); E("s_cbranch_scc0 CKS" + tag); L("CKD" + tag)
    if post: post()
    L("CKR" + tag)
def nonce_post():
    E("v_readfirstlane_b32 s38, v42"); E("v_mov_b32 v43, %d" % NLO); E("ds_write_b32 v43, v42")
LD_N = "buffer_load_dwordx2 v[42:43], v44, %s, 0 offen sc1" % sr(S_DBG, 4)
LD_W = "buffer_load_dword v47, v45, %s, 0 offen sc1" % sr(S_WS, 4)
LD_G = "buffer_load_dword v47, v45, %s, 0 offen offset:1024 sc1" % sr(S_WS, 4)
def main_loop(ssm):
    q = []
    for j in range(4): q.extend([j] * gsize(j))
    def cnt(g): return len(q) - 1 - max(k for k, t in enumerate(q) if t == g)
    NS = OPT["NS"]; NC = NS + 6
    wl = [(i, j) for i in range(8 if ssm else 12) for j in range(2)]
    per = -(-len(wl) // (28 - NC))
    E("s_waitcnt vmcnt(%d)" % cnt(0)); E("s_barrier")
    for s in frag_reads(0, ssm): E(s)
    for n in range(28):
        if n % 2 == 0 and n < 26:
            E("s_waitcnt vmcnt(%d) lgkmcnt(0)" % cnt(n // 2 + 1))
            if n == NC and not ssm: w4_check("v_cmp_eq_u32 vcc, s38, v47", "W")
            E("s_barrier")
            if n == 8 and not ssm: w4_check("v_cmp_eq_u32 vcc, 1, v43", "N", nonce_post)
        else:
            E("s_waitcnt lgkmcnt(0)")
        ms = mfmas(n, ssm); rs = frag_reads(n + 1, ssm) if n < 27 else []
        for k, mm in enumerate(ms):
            E(mm)
            for s in rs[2 * k:2 * k + 2]: E(s)
            if k == 3 and not ssm and n in (2, NS, max(22, NC)): E({2: LD_N, NS: LD_W, max(22, NC): LD_G}[n]); q.append('p')
            if k == 3 and n % 2 == 0: dma_group(n // 2 + 4); q.extend([n // 2 + 4] * gsize(n // 2 + 4))
            if k == 3 and n >= NC:
                for (i, j) in wl[:per]: p2_load('W', i, WSL[i], vP2W, j); q.append('w')
                wl = wl[per:]
    assert not wl
    return cnt('p') if not ssm else 0
def spins():
    for tag, ld, c in (("N", LD_N, "v_cmp_eq_u32 vcc, 1, v43"), ("W", LD_W, "v_cmp_eq_u32 vcc, s38, v47"), ("G", LD_G, "v_cmp_eq_u32 vcc, s38, v47")):
        L("CKS" + tag); poll(ld, c, "-1"); E("s_branch CKD" + tag)
SC = " sc1"
def gelu_calc(t, extra=None):
    g, u = AG[t], AU[t]
    for r0 in range(0, 16, 4):
        T = vT
        if extra:
            for _ in range(3): lds_w(*extra.pop(0))
        P = lambda b: vr(b, 2)
        for i in (0, 2): E("v_pk_mul_f32 %s, %s, %s" % (P(T + i), P(g + r0 + i), P(g + r0 + i)))
        for i in (0, 2): E("v_pk_fma_f32 %s, %s, s[72:73], %s op_sel_hi:[1,0,0]" % (P(T + i), P(T + i), P(T + 8)))
        for i in (0, 2): E("v_pk_mul_f32 %s, %s, %s" % (P(T + i), P(T + i), P(g + r0 + i)))
        for i in range(4): E("v_exp_f32 %s, %s" % (vr(T + i), vr(T + i)))
        for i in (0, 2): E("v_pk_mul_f32 %s, %s, %s" % (P(T + 4 + i), P(g + r0 + i), P(u + r0 + i)))
        for i in (0, 2): E("v_pk_add_f32 %s, %s, s[30:31] op_sel_hi:[1,0]" % (P(T + i), P(T + i)))
        for i in range(4): E("v_rcp_f32 %s, %s" % (vr(T + i), vr(T + i)))
        for i in (0, 2): E("v_pk_mul_f32 %s, %s, %s" % (P(T + i), P(T + i), P(T + 4 + i)))
        for i in range(2): E("v_cvt_pk_bf16_f32 %s, %s, %s" % (vr(g + r0 // 2 + i), vr(T + 2 * i), vr(T + 2 * i + 1)))
def gelu_st(t):
    g = AG[t]
    E("buffer_store_dwordx4 %s, %s, %s, s%d offen%s" % (vr(g, 4), vr(vT + 9), sr(S_WS, 4), 73 + t, SC))
    E("buffer_store_dwordx4 %s, %s, %s, s%d offen offset:1024%s" % (vr(g + 4, 4), vr(vT + 9), sr(S_WS, 4), 73 + t, SC))
WSL = [192, 200, 208, 216, 224, 232, 240, 248, 160, 168, 176, 184, 72, 80, 88]
HSL = [16, 24, 32, 40, 48, 56, 64]
ACC2 = 96
vP2W = 46
def p2_ks(i): return i if i < 14 else i - 14
def p2_load(kind, i, R, va, only=None):
    base = (82 if kind == 'W' else 86) + (0 if i < 14 else 2)
    for j in range(2):
        if only is not None and j != only: continue
        E("s_add_u32 s93, s%d, s%d" % (base + j, ROTS[i]))
        E("buffer_load_dwordx4 %s, v%d, %s, s93 offen" % (vr(R + 4 * j, 4), va, sr(S_WS, 4)))
ROTS = list(range(4, 20)) + list(range(22, 27))
def lds_w(i, j, va, other):
    E("s_add_u32 m0, s%d, %d" % (27 + other, (i - 15) * 2048 + j * 1024)); E("s_add_u32 s93, s%d, s%d" % (84 + j, ROTS[i]))
    if other: E("s_sub_u32 s93, s93, %d" % (4 * 7 * 1024))
    E("buffer_load_dwordx4 v%d, %s, s93 offen lds" % (va, sr(S_WS, 4)))
def p2_setup():
    if OPT["MAP1"] == "4x7":
        E("s_cmp_ge_u32 s%d, 7" % sCG); E("s_cselect_b32 s94, 1, 0"); E("s_mul_i32 s95, s94, 7"); E("s_sub_u32 s95, s%d, s95" % sCG)
    else:
        E("s_and_b32 s94, s%d, 1" % sCG); E("s_lshr_b32 s95, s%d, 1" % sCG)
    E("s_lshl_b32 s71, s%d, 1" % sRT); E("s_add_u32 s94, s94, s71")
    E("s_mul_i32 s71, s%d, %d" % (sW, 14 * 1024)); E("s_mul_i32 s75, s%d, %d" % (sW, 7 * 1024)); E("s_add_u32 s75, s75, %d" % (112 * 1024))
    E("s_mul_i32 s77, s95, %d" % (2 * NKS * 1024)); E("s_add_u32 s77, s77, %d" % WB0)
    E("s_add_u32 s82, s77, s71"); E("s_add_u32 s83, s82, %d" % (NKS * 1024)); E("s_add_u32 s84, s77, s75"); E("s_add_u32 s85, s84, %d" % (NKS * 1024))
    E("s_mul_i32 s77, s94, %d" % (2 * NKS * 1024))
    E("s_add_u32 s86, s77, s71"); E("s_add_u32 s87, s86, %d" % (NKS * 1024)); E("s_add_u32 s88, s77, s75"); E("s_add_u32 s89, s88, %d" % (NKS * 1024))
    r = OPT["ROT"]
    E("s_mul_i32 s4, s95, %d" % (2048 * r)); E("s_mul_i32 s18, s95, %d" % (1024 * r))
    for i in range(1, 21):
        if i == 14: continue
        E("s_add_u32 s%d, s%d, 1024" % (ROTS[i], ROTS[i - 1])); E("s_cmp_eq_u32 s%d, %d" % (ROTS[i], 14336 if i < 14 else 7168))
        E("s_cselect_b32 s%d, 0, s%d" % (ROTS[i], ROTS[i]))
    E("s_lshl_b32 s27, s%d, 14" % sW); E("s_sub_u32 s28, s27, 65536")
npoll = [0]
def poll(ld, cmp_, mlo):
    n = npoll[0]; npoll[0] += 1
    E("s_mov_b32 s81, 0")
    L("POLL%d" % n)
    E(ld); E("s_waitcnt vmcnt(0)"); E(cmp_); E("s_nop 4")
    E("s_andn2_b32 s71, %s, vcc_lo" % mlo); E("s_cbranch_scc0 POLLD%d" % n)
    E("s_add_u32 s81, s81, 1"); E("s_cmp_gt_u32 s81, 0x10000"); E("s_cbranch_scc1 POLLD%d" % n)
    E("s_sleep 1"); E("s_branch POLL%d" % n)
    L("POLLD%d" % n)
def gelu_setup():
    c0 = -2.0 * math.log2(math.e) * math.sqrt(2.0 / math.pi)
    E("s_mov_b32 s30, 1.0"); E("s_mov_b32 s72, %s" % f2u(c0 * 0.044715)); E("v_mov_b32 %s, %s" % (vr(vT + 8), f2u(c0)))
    E("v_lshlrev_b32 %s, 4, %s" % (vr(vT + 9), vr(vL)))
    E("s_lshl_b32 s75, s%d, 2" % sRT); E("s_add_u32 s73, s75, s%d" % sTA); E("s_xor_b32 s74, s73, 1")
    E("s_mul_i32 s73, s73, %d" % (NKS * 1024)); E("s_mul_i32 s74, s74, %d" % (NKS * 1024))
    E("s_lshl_b32 s75, s%d, 13" % sCG); E("s_lshr_b32 s76, s%d, 1" % sW); E("s_lshl_b32 s76, s76, 11")
    E("s_add_u32 s75, s75, s76"); E("s_add_u32 s76, s73, %d" % (112 * 1024))
    E("s_add_u32 s73, s73, s75"); E("s_add_u32 s74, s74, s75")
    E("s_lshl_b32 s75, s%d, 12" % sCG); E("s_add_u32 s76, s76, s75")
def dump_stamps(base):
    if OPT["STAMP"]:
        E("s_lshl_b32 s92, s2, 3"); E("s_add_u32 s92, s92, s%d" % sW); E("s_lshl_b32 s92, s92, 8"); E("s_add_u32 s92, s92, %d" % base)
        E("s_mov_b32 s%d, %d" % (S_WS + 2, 1 << 26)); E("v_lshlrev_b32 v1, 2, v%d" % vL)
        E("buffer_store_dword v0, v1, %s, s92 offen" % sr(S_WS, 4))

def k1():
    L(NAME + "_kernel")
    E("s_cmp_ge_u32 s2, 256"); E("s_cbranch_scc1 K1_END")
    E("s_add_u32 s2, s2, 224"); E("s_and_b32 s2, s2, 255")
    load_args()
    E("v_lshrrev_b32 v2, 6, v0"); E("v_and_b32 v%d, 63, v0" % vL); E("v_readfirstlane_b32 s%d, v2" % sW)
    if OPT["STAMP"]: E("s_nop 1"); E("v_mov_b32 v0, 0")
    E("s_waitcnt lgkmcnt(0)")
    stamp(0)
    srd(S_X, P_X, XN); srd(S_WS, P_WS, WS_SZ)
    E("s_cmp_ge_u32 s2, 224"); E("s_cbranch_scc1 K1_PREP")
    E("s_and_b32 s71, s2, 7"); E("s_lshr_b32 s72, s2, 3")
    if OPT["MAP1"] == "4x7":
        E("s_lshr_b32 s73, s71, 1"); E("s_lshl_b32 s73, s73, 2"); E("s_and_b32 s74, s72, 3"); E("s_add_u32 s%d, s73, s74" % sRT)
        E("s_and_b32 s73, s71, 1"); E("s_mul_i32 s73, s73, 7"); E("s_lshr_b32 s74, s72, 2"); E("s_add_u32 s%d, s73, s74" % sCG)
    else:
        E("s_lshl_b32 s73, s71, 1"); E("s_and_b32 s74, s72, 1"); E("s_add_u32 s%d, s73, s74" % sRT); E("s_lshr_b32 s%d, s72, 1" % sCG)
    E("s_cmp_lt_u32 s%d, 4" % sW)
    E("s_cselect_b32 s%d, s%d, s%d" % (S_B, P_BRE, P_BIM)); E("s_cselect_b32 s%d, s%d, s%d" % (S_B + 1, P_BRE + 1, P_BIM + 1))
    E("s_cselect_b32 s%d, s%d, s%d" % (S_W, P_WG, P_WU)); E("s_cselect_b32 s%d, s%d, s%d" % (S_W + 1, P_WG + 1, P_WU + 1))
    E("s_and_b32 s%d, s%d, 0xffff" % (S_B + 1, S_B + 1)); E("s_mov_b32 s%d, %d" % (S_B + 2, BN)); E("s_mov_b32 s%d, 0x20000" % (S_B + 3))
    E("s_and_b32 s%d, s%d, 0xffff" % (S_W + 1, S_W + 1)); E("s_mov_b32 s%d, %d" % (S_W + 2, WN)); E("s_mov_b32 s%d, 0x20000" % (S_W + 3))
    E("s_lshl_b32 s%d, s%d, 11" % (sM1, sW)); E("s_lshl_b32 s%d, s%d, 10" % (sM2, sW))
    E("s_and_b32 s71, s%d, 1" % sW); E("s_lshl_b32 s71, s71, 1"); E("s_bfe_u32 s72, s%d, 0x10001" % sW); E("s_add_u32 s%d, s71, s72" % sTA)
    T = vT
    C("DMA source offsets")
    E("s_movk_i32 s77, 896"); E("s_and_b32 s72, s%d, 3" % sW)
    E("v_lshrrev_b32 %s, 4, %s" % (vr(T), vr(vL))); E("v_and_b32 %s, 15, %s" % (vr(T + 1), vr(vL)))
    E("v_lshlrev_b32 %s, 2, %s" % (vr(T + 2), vr(T))); E("v_xor_b32 %s, %s, %s" % (vr(T + 1), vr(T + 1), vr(T + 2)))
    E("v_mul_u32_u24 %s, 3584, %s" % (vr(T), vr(T))); E("v_lshl_add_u32 %s, %s, 4, %s" % (vr(T), vr(T + 1), vr(T)))
    E("s_mul_i32 s71, s72, %d" % (8 * 3584)); E("s_lshl_b32 s73, s%d, 8" % sCG); E("s_add_u32 s71, s71, s73")
    E("v_add_u32 %s, s71, %s" % (vr(vWD), vr(T)))
    dma_part(0, 3)
    for m, dst in ((0, vXD0), (1, vXD1)):
        E("v_lshrrev_b32 %s, 3, %s" % (vr(T), vr(vL)))
        E("s_lshl_b32 s71, s%d, 4" % sW); E("s_add_u32 s71, s71, %d" % (8 * m)); E("v_add_u32 %s, s71, %s" % (vr(T), vr(T)))
        E("v_and_b32 %s, 31, %s" % (vr(T + 1), vr(T)))
        perm(T + 2, T + 1, T + 3)
        E("v_and_b32 %s, 96, %s" % (vr(T), vr(T))); E("v_add_u32 %s, %s, %s" % (vr(T), vr(T), vr(T + 2)))
        E("s_lshl_b32 s71, s%d, 7" % sRT); E("v_add_u32 %s, s71, %s" % (vr(T), vr(T)))
        E("v_mul_lo_u32 %s, %s, s77" % (vr(T), vr(T)))
        E("v_bfe_u32 %s, %s, 1, 3" % (vr(T + 1), vr(T + 1))); E("v_and_b32 %s, 7, %s" % (vr(T + 2), vr(vL)))
        E("v_xor_b32 %s, %s, %s" % (vr(T + 1), vr(T + 1), vr(T + 2))); E("v_lshl_add_u32 %s, %s, 4, %s" % (vr(dst), vr(T + 1), vr(T)))
        dma_part(0, m)
    E("v_lshrrev_b32 %s, 3, %s" % (vr(T), vr(vL))); E("s_and_b32 s72, s%d, 3" % sW); E("s_lshl_b32 s71, s72, 3")
    E("v_add_u32 %s, s71, %s" % (vr(T), vr(T))); E("v_bfe_u32 %s, %s, 1, 3" % (vr(T + 1), vr(T)))
    E("s_lshl_b32 s71, s%d, 5" % sCG); E("v_add_u32 %s, s71, %s" % (vr(T), vr(T))); E("v_mul_lo_u32 %s, %s, s77" % (vr(T), vr(T)))
    E("v_xor_b32 %s, %s, %s" % (vr(T + 1), vr(T + 1), vr(T + 2))); E("v_lshl_add_u32 %s, %s, 4, %s" % (vr(vBD), vr(T + 1), vr(T)))
    dma_part(0, 2)
    C("SSM parameter loads (p = cg*32 + (l&31))")
    E("v_and_b32 %s, 31, %s" % (vr(T), vr(vL))); E("s_lshl_b32 s71, s%d, 5" % sCG)
    E("v_add_lshl_u32 %s, %s, s71, 1" % (vr(T + 10), vr(T)))
    for p, d in ((P_LRE, T + 11), (P_LIM, T + 12), (P_LDT, T + 13)):
        E("global_load_ushort %s, %s, %s" % (vr(d), vr(T + 10), sr(p, 2)))
    for j in range(1, 4): dma_group(j)
    C("LDS fragment read addresses")
    E("v_lshrrev_b32 %s, 5, %s" % (vr(T + 1), vr(vL))); E("v_bfe_u32 %s, %s, 1, 3" % (vr(T + 2), vr(T)))
    E("s_lshl_b32 s71, s%d, 12" % sTA); E("s_xor_b32 s72, s71, 4096")
    for ks in range(4):
        E("v_add_u32 %s, %d, %s" % (vr(T + 3), 2 * ks, vr(T + 1))); E("v_xor_b32 %s, %s, %s" % (vr(T + 3), vr(T + 3), vr(T + 2)))
        E("v_lshlrev_b32 %s, 4, %s" % (vr(T + 3), vr(T + 3))); E("v_lshl_add_u32 %s, %s, 7, %s" % (vr(T + 3), vr(T), vr(T + 3)))
        E("v_add_u32 %s, s71, %s" % (vr(vXA + ks), vr(T + 3))); E("v_add_u32 %s, s72, %s" % (vr(vXB + ks), vr(T + 3)))
        E("v_add_u32 %s, 16384, %s" % (vr(vBA + ks), vr(T + 3)))
    E("v_bfe_u32 %s, %s, 2, 2" % (vr(T + 2), vr(vL)))
    E("v_lshl_add_u32 %s, %s, 3, %s" % (vr(T + 3), vr(T + 1), vr(T + 2)))
    E("v_lshlrev_b32 %s, 8, %s" % (vr(T + 3), vr(T + 3))); E("s_lshr_b32 s71, s%d, 1" % sW)
    E("v_xor_b32 %s, s71, %s" % (vr(T + 2), vr(T + 2))); E("v_lshl_add_u32 %s, %s, 6, %s" % (vr(T + 3), vr(T + 2), vr(T + 3)))
    E("v_bfe_u32 %s, %s, 4, 1" % (vr(T + 2), vr(vL))); E("v_lshl_add_u32 %s, %s, 5, %s" % (vr(T + 3), vr(T + 2), vr(T + 3)))
    E("v_and_b32 %s, 3, %s" % (vr(T + 2), vr(vL))); E("v_lshl_add_u32 %s, %s, 3, %s" % (vr(T + 3), vr(T + 2), vr(T + 3)))
    E("v_add_u32 %s, %d, %s" % (vr(vWA0), WS0, vr(T + 3))); E("v_add_u32 %s, %d, %s" % (vr(vWA1), WS0 + 49152, vr(T + 3)))
    srd(S_DBG, P_DBG, 256); p2_setup()
    E("s_and_b32 s71, s2, 7"); E("s_lshl_b32 s71, s71, 7"); E("s_add_u32 s71, s71, %d" % FL0); E("s_lshl_b32 s72, s2, 7"); E("s_and_b32 s72, s72, 128")
    E("s_cmp_eq_u32 s%d, 4" % sW); E("s_cselect_b32 s71, s71, 0x7f000000"); E("s_cselect_b32 s72, s72, 0x7f000000")
    E("v_and_b32 v45, 31, v%d" % vL); E("v_lshl_add_u32 v45, v45, 2, s71"); E("v_mov_b32 v44, s72"); E("v_lshlrev_b32 v%d, 4, v%d" % (vP2W, vL))
    E("s_cmp_ge_u32 s%d, 4" % sW); E("s_cbranch_scc1 K1_PLAIN")
    E("s_waitcnt vmcnt(9)")
    a, b, d = T + 11, T + 12, T + 13
    for r in (a, b, d): E("v_lshlrev_b32 %s, 16, %s" % (vr(r), vr(r)))
    E("v_mul_f32 %s, %s, %s" % (vr(d), f2u(math.log2(math.e)), vr(d))); E("v_exp_f32 %s, %s" % (vr(d), vr(d))); E("s_nop 0")
    E("v_cvt_pk_bf16_f32 %s, %s, %s" % (vr(d), vr(d), vr(d))); E("v_lshlrev_b32 %s, 16, %s" % (vr(d), vr(d)))
    E("v_mul_f32 %s, %s, %s" % (vr(T), vr(d), vr(a))); E("v_mul_f32 %s, %s, %s" % (vr(T + 1), vr(d), vr(b)))
    E("v_mul_f32 %s, %s, %s" % (vr(T), f2u(math.log2(math.e)), vr(T))); E("v_mul_f32 %s, %s, %s" % (vr(T + 1), f2u(0.5 / math.pi), vr(T + 1)))
    E("v_rndne_f32 %s, %s" % (vr(T + 2), vr(T + 1))); E("v_sub_f32 %s, %s, %s" % (vr(T + 1), vr(T + 1), vr(T + 2)))
    E("v_exp_f32 %s, %s" % (vr(T), vr(T))); E("v_cos_f32 %s, %s" % (vr(T + 2), vr(T + 1))); E("v_sin_f32 %s, %s" % (vr(T + 3), vr(T + 1))); E("s_nop 0")
    E("v_mul_f32 %s, %s, %s" % (vr(vLR), vr(T), vr(T + 2))); E("v_mul_f32 %s, %s, %s" % (vr(vLI), vr(T), vr(T + 3)))
    C("coef = 2*(lam-1)/Lam")
    E("v_add_f32 %s, -1.0, %s" % (vr(T), vr(vLR))); E("v_mul_f32 %s, %s, %s" % (vr(T + 1), vr(a), vr(a)))
    E("v_fma_f32 %s, %s, %s, %s" % (vr(T + 1), vr(b), vr(b), vr(T + 1))); E("v_rcp_f32 %s, %s" % (vr(T + 1), vr(T + 1)))
    E("v_mul_f32 %s, %s, %s" % (vr(vCR), vr(T), vr(a))); E("v_mul_f32 %s, %s, %s" % (vr(vCI), vr(vLI), vr(a)))
    E("v_fma_f32 %s, %s, %s, %s" % (vr(vCR), vr(vLI), vr(b), vr(vCR))); E("v_fma_f32 %s, -%s, %s, %s" % (vr(vCI), vr(T), vr(b), vr(vCI)))
    E("v_add_f32 %s, %s, %s" % (vr(T + 1), vr(T + 1), vr(T + 1)))
    E("v_mul_f32 %s, %s, %s" % (vr(vCR), vr(vCR), vr(T + 1))); E("v_mul_f32 %s, %s, %s" % (vr(vCI), vr(vCI), vr(T + 1)))
    cmul(T, T + 1, vLR, vLI, vLR, vLI); cmul(T + 2, T + 3, T, T + 1, T, T + 1); cmul(T, T + 1, T + 2, T + 3, T + 2, T + 3)
    cmul(vL16R, vL16I, T, T + 1, T, T + 1)
    cmul(T, T + 1, vL16R, vL16I, vL16R, vL16I); cmul(T + 2, T + 3, T, T + 1, T, T + 1); cmul(vL128R, vL128I, T + 2, T + 3, T + 2, T + 3)
    stamp(1)
    main_loop(True)
    stamp(2)
    gelu_setup()
    E("v_mov_b32 v%d, %d" % (T + 11, NLO)); E("ds_read_b32 v%d, v%d" % (T + 11, T + 11))
    C("pass 1: end state of this lane's 16 steps")
    H = [T, T + 2]
    cfma(H[1], H[1] + 1, vLR, vLI, ASR, ASI, ASR + 1, ASI + 1)
    for j in range(2, 16):
        cfma(H[j & 1], H[j & 1] + 1, vLR, vLI, H[(j - 1) & 1], H[(j - 1) & 1] + 1, ASR + j, ASI + j)
    E("v_and_b32 %s, 31, %s" % (vr(T + 4), vr(vL))); E("v_lshlrev_b32 %s, 3, %s" % (vr(T + 4), vr(T + 4)))
    E("s_lshl_b32 s71, s%d, 9" % sTA); E("s_add_u32 s71, s71, %d" % EXO)
    E("v_lshl_add_u32 %s, %s, 3, s71" % (vr(T + 5), vr(vL)))
    E("ds_write_b64 %s, %s" % (vr(T + 5), vr(H[1], 2)))
    E("v_add_u32 %s, %d, %s" % (vr(T + 5), EXO, vr(T + 4)))
    E("s_waitcnt lgkmcnt(0)"); E("s_barrier")
    for s in range(8): E("ds_read_b64 %s, %s offset:%d" % (vr(vEE + 2 * s, 2), vr(T + 5), s * 256))
    E("s_lshl_b32 s78, s%d, 13" % sCG); E("s_add_u32 s78, s78, %d" % E0); E("s_add_u32 s79, s78, 4096")
    E("v_mov_b32 %s, %s" % (vr(T + 10), vr(T + 4))); E("v_lshlrev_b32 %s, 1, %s" % (vr(T + 12), vr(T + 4)))
    E("v_readfirstlane_b32 s38, v%d" % (T + 11))
    E("s_cmp_lg_u32 s%d, 0" % sW); E("s_cbranch_scc1 K1_NOPUB")
    E("s_waitcnt lgkmcnt(0)")
    cfma(H[1], H[1] + 1, vL16R, vL16I, vEE, vEE + 1, vEE + 2, vEE + 3)
    for s in range(2, 8):
        cfma(H[s & 1], H[s & 1] + 1, vL16R, vL16I, H[(s - 1) & 1], H[(s - 1) & 1] + 1, vEE + 2 * s, vEE + 2 * s + 1)
    E("s_lshl_b32 s71, s%d, 9" % sRT); E("s_add_u32 s71, s71, s78")
    E("v_mov_b32 %s, %s" % (vr(T + 4), vr(H[1]))); E("v_mov_b32 %s, s38" % vr(T + 5)); E("v_mov_b32 %s, %s" % (vr(T + 6), vr(H[1] + 1))); E("v_mov_b32 %s, s38" % vr(T + 7))
    E("buffer_store_dwordx4 %s, %s, %s, s71 offen sc1" % (vr(T + 4, 4), vr(T + 12), sr(S_WS, 4)))
    L("K1_NOPUB")
    C("gate values for this lane's 16 steps -> v2..v17")
    E("v_lshrrev_b32 v18, 5, v%d" % vL); E("v_lshlrev_b32 v18, 6, v18"); E("s_lshl_b32 s71, s%d, 2" % sRT); E("s_add_u32 s71, s71, s%d" % sTA)
    E("s_lshl_b32 s71, s71, 7"); E("s_add_u32 s71, s71, %d" % G0)
    for q in range(4): E("buffer_load_dwordx4 %s, v18, %s, s71 offen offset:%d sc1" % (vr(2 + 4 * q, 4), sr(S_WS, 4), 16 * q))
    stamp(3)
    gelu_calc(0); gelu_calc(1)
    stamp(4)
    C("look-back")
    RC = [64 + 4 * c if c < 8 else 128 + 4 * (c - 8) for c in range(15)]
    E("s_mov_b32 s81, 0")
    L("K1_LBP")
    for c in range(15):
        E("s_cmp_le_u32 s%d, %d" % (sRT, c)); E("s_cbranch_scc1 K1_LBL")
        E("buffer_load_dwordx4 %s, %s, %s, s%d offen offset:%d sc1" % (vr(RC[c], 4), vr(T + 12), sr(S_WS, 4), 78 + c // 8, (c % 8) * 512))
    L("K1_LBL")
    E("v_mov_b32 %s, 0" % vr(T + 6)); E("s_waitcnt vmcnt(0)")
    for c in range(15):
        E("s_cmp_le_u32 s%d, %d" % (sRT, c)); E("s_cbranch_scc1 K1_LBC")
        E("v_xor_b32 %s, s38, %s" % (vr(T + 7), vr(RC[c] + 1))); E("v_xor_b32 %s, s38, %s" % (vr(T), vr(RC[c] + 3)))
        E("v_or3_b32 %s, %s, %s, %s" % (vr(T + 6), vr(T + 6), vr(T + 7), vr(T)))
    L("K1_LBC")
    E("v_cmp_ne_u32 vcc, 0, %s" % vr(T + 6)); E("s_nop 4"); E("s_or_b32 s71, vcc_lo, vcc_hi"); E("s_cbranch_scc0 K1_LBK")
    E("s_add_u32 s81, s81, 1"); E("s_cmp_gt_u32 s81, 0x10000"); E("s_cbranch_scc1 K1_LBK")
    E("s_sleep 1"); E("s_branch K1_LBP")
    L("K1_LBK")
    stamp(9)
    gelu_st(0); gelu_st(1)
    E("v_mov_b32 %s, 0" % vr(T)); E("v_mov_b32 %s, 0" % vr(T + 1))
    E("v_lshrrev_b32 %s, 5, %s" % (vr(T + 6), vr(vL))); E("s_lshl_b32 s71, s%d, 1" % sTA); E("v_add_u32 %s, s71, %s" % (vr(T + 6), vr(T + 6)))
    E("s_waitcnt lgkmcnt(0)")
    E("s_cmp_eq_u32 s%d, 0" % sRT); E("s_cbranch_scc1 K1_LBD")
    for c in range(1, 15):
        E("s_cmp_le_u32 s%d, %d" % (sRT, c)); E("s_cbranch_scc1 K1_LX%d" % c)
        cfma(RC[c], RC[c] + 2, vL128R, vL128I, RC[c - 1], RC[c - 1] + 2, RC[c], RC[c] + 2)
    E("v_mov_b32 %s, %s" % (vr(T), vr(RC[14]))); E("v_mov_b32 %s, %s" % (vr(T + 1), vr(RC[14] + 2)))
    L("K1_LBD")
    for s in range(7):
        E("v_cmp_lt_u32 vcc, %d, %s" % (s, vr(T + 6)))
        cfma(T + 2, T + 3, vL16R, vL16I, T, T + 1, vEE + 2 * s, vEE + 2 * s + 1)
        E("v_cndmask_b32 %s, %s, %s, vcc" % (vr(T), vr(T), vr(T + 2))); E("v_cndmask_b32 %s, %s, %s, vcc" % (vr(T + 1), vr(T + 1), vr(T + 3)))
    C("pass 2")
    if OPT["EARLY"]:
        for i in (13, 14): p2_load('W', i, WSL[i], vP2W)
    for j in range(16):
        hr, hi = (T, T + 1) if j == 0 else (ASR + j - 1, ASI + j - 1)
        cfma(ASR + j, ASI + j, vLR, vLI, hr, hi, ASR + j, ASI + j)
    OR_, OI = vEC, vEC + 8
    for j in range(0, 16, 2):
        P = lambda b: vr(b, 2)
        E("v_pk_mul_f32 %s, %s, %s op_sel_hi:[0,1]" % (P(T + 4), P(vCR), P(2 + j)))
        E("v_pk_mul_f32 %s, %s, %s op_sel:[1,0]" % (P(T + 6), P(vCR), P(2 + j)))
        E("v_pk_mul_f32 %s, %s, %s" % (P(T), P(T + 4), P(ASR + j))); E("v_pk_mul_f32 %s, %s, %s" % (P(T + 2), P(T + 4), P(ASI + j)))
        E("v_pk_fma_f32 %s, %s, %s, %s neg_lo:[1,0,0] neg_hi:[1,0,0]" % (P(T), P(T + 6), P(ASI + j), P(T)))
        E("v_pk_fma_f32 %s, %s, %s, %s neg_lo:[1,0,1] neg_hi:[1,0,1]" % (P(T + 2), P(T + 6), P(ASR + j), P(T + 2)))
        E("v_cvt_pk_bf16_f32 %s, %s, %s" % (vr(OR_ + j // 2), vr(T), vr(T + 1)))
        E("v_cvt_pk_bf16_f32 %s, %s, %s" % (vr(OI + j // 2), vr(T + 2), vr(T + 3)))
    C("transpose through LDS: rows k (re p, im p) of 64 B (32 t)")
    E("s_lshl_b32 s71, s%d, 12" % sW); E("s_add_u32 s71, s71, %d" % TRO)
    E("v_lshrrev_b32 %s, 5, %s" % (vr(T), vr(vL))); E("v_lshlrev_b32 %s, 5, %s" % (vr(T + 1), vr(T)))
    E("v_lshl_add_u32 %s, %s, 3, %s" % (vr(T + 1), vr(T + 10), vr(T + 1))); E("v_add_u32 %s, s71, %s" % (vr(T + 1), vr(T + 1)))
    E("ds_write_b128 %s, %s" % (vr(T + 1), vr(OR_, 4))); E("ds_write_b128 %s, %s offset:16" % (vr(T + 1), vr(OR_ + 4, 4)))
    E("ds_write_b128 %s, %s offset:2048" % (vr(T + 1), vr(OI, 4))); E("ds_write_b128 %s, %s offset:2064" % (vr(T + 1), vr(OI + 4, 4)))
    E("v_bfe_u32 %s, %s, 2, 2" % (vr(T + 2), vr(vL))); E("v_lshl_add_u32 %s, %s, 3, %s" % (vr(T + 2), vr(T), vr(T + 2)))
    E("v_lshlrev_b32 %s, 6, %s" % (vr(T + 2), vr(T + 2)))
    E("v_and_b32 %s, 1, %s" % (vr(T + 3), vr(vL))); E("v_lshl_add_u32 %s, %s, 5, %s" % (vr(T + 2), vr(T + 3), vr(T + 2)))
    E("v_bfe_u32 %s, %s, 4, 1" % (vr(T + 3), vr(vL))); E("v_lshl_add_u32 %s, %s, 4, %s" % (vr(T + 2), vr(T + 3), vr(T + 2)))
    E("v_bfe_u32 %s, %s, 1, 1" % (vr(T + 3), vr(vL))); E("v_lshl_add_u32 %s, %s, 3, %s" % (vr(T + 2), vr(T + 3), vr(T + 2)))
    E("v_add_u32 %s, s71, %s" % (vr(T + 2), vr(T + 2)))
    E("s_waitcnt lgkmcnt(0)")
    if OPT["EARLY"]: p2_load('W', 12, WSL[12], vP2W)
    for q in range(4):
        E("ds_read_b64_tr_b16 %s, %s offset:%d" % (vr(ASR + 4 * q, 2), vr(T + 2), q * 1024))
        E("ds_read_b64_tr_b16 %s, %s offset:%d" % (vr(ASR + 4 * q + 2, 2), vr(T + 2), q * 1024 + 256))
    for q in range(4):
        E("s_waitcnt lgkmcnt(%d)" % (6 - 2 * q))
        E("buffer_store_dwordx4 %s, %s, %s, s76 offen offset:%d%s" % (vr(ASR + 4 * q, 4), vr(vT + 9), sr(S_WS, 4), q * 1024, SC))
    stamp(13)
    E("s_branch K1_JOIN")
    spins()
    for c in range(1, 15):
        L("K1_LX%d" % c); E("v_mov_b32 %s, %s" % (vr(T), vr(RC[c - 1]))); E("v_mov_b32 %s, %s" % (vr(T + 1), vr(RC[c - 1] + 2))); E("s_branch K1_LBD")
    L("K1_PLAIN")
    stamp(1)
    pc = main_loop(False)
    stamp(2)
    gelu_setup()
    for i in range(12, 15): p2_load('W', i, WSL[i], vP2W)
    E("s_waitcnt vmcnt(%d)" % (pc + 6)); w4_check("v_cmp_eq_u32 vcc, s38, v47", "G")
    E("s_barrier")
    stamp(3)
    ex = [(i, j, vP2W, o) for i in range(15, 21) for j in range(2) for o in range(2)] if OPT["PACE"] else None
    gelu_calc(0, ex); gelu_st(0); gelu_calc(1, ex); gelu_st(1)
    stamp(4)
    L("K1_JOIN")
    E("s_waitcnt vmcnt(0)"); stamp(14); E("s_barrier")
    stamp(5)
    E("v_mov_b32 v2, v%d" % vP2W)
    E("s_cmp_lg_u32 s%d, 4" % sW); E("s_cbranch_scc1 K1_NOPOLL")
    E("s_lshl_b32 s80, s%d, 7" % sRT); E("s_add_u32 s80, s80, %d" % (FL0 + 2048)); E("s_lshl_b32 s71, s%d, 2" % sCG)
    E("v_mov_b32 v3, s71"); E("v_mov_b32 v4, s38")
    E("buffer_store_dword v4, v3, %s, s80 offen sc1" % sr(S_WS, 4))
    E("v_and_b32 v5, 15, v%d" % vL); E("v_lshlrev_b32 v5, 2, v5")
    poll("buffer_load_dword v6, v5, %s, s80 offen sc1" % sr(S_WS, 4), "v_cmp_eq_u32 vcc, s38, v6", "0x3fff")
    stamp(15)
    L("K1_NOPOLL")
    E("s_cmp_ge_u32 s%d, 4" % sW); E("s_cbranch_scc1 K1_NOW")
    for i in range(8, 12 if OPT["EARLY"] else 15): p2_load('W', i, WSL[i], 2)
    L("K1_NOW")
    if not OPT["PACE"]:
        for i in range(15, 21):
            for j in range(2): lds_w(i, j, 2, 0)
    p2_main()
    L("K1_PREP")
    E("s_sub_u32 s70, s2, 224"); E("s_lshl_b32 s65, s%d, 5" % sW); E("s_add_u32 s65, s65, s70")
    E("s_lshl_b32 s70, s70, 3"); E("s_add_u32 s70, s70, s%d" % sW)
    srd(S_T, P_GW, 896)
    E("v_lshrrev_b32 v2, 3, v1"); E("s_lshl_b32 s71, s70, 3"); E("v_add_u32 v2, s71, v2")
    E("v_and_b32 v3, 7, v1"); E("v_lshlrev_b32 v3, 4, v3"); E("v_mul_u32_u24 v4, 896, v2"); E("v_add_u32 v4, v4, v3")
    E("v_lshlrev_b32 v5, 4, v1"); E("v_and_b32 v122, 7, v1"); E("v_lshlrev_b32 v122, 7, v122"); E("s_mov_b32 s38, %d" % FL0)
    E("s_cmp_ge_u32 s65, 224"); E("s_cbranch_scc1 K1_PN")
    E("s_cmp_ge_u32 s65, 112"); E("s_cbranch_scc1 K1_PC")
    C("W_down k-step s65 -> fragments")
    srd(S_W, P_WD, WN)
    E("s_mul_i32 s71, s65, 14336"); E("s_mul_i32 s72, s%d, 14336" % sW)
    for i in range(14):
        E("s_add_u32 m0, s72, %d" % (i * 1024)); E("s_add_u32 s73, s71, %d" % (i * 1024))
        E("buffer_load_dwordx4 v5, %s, s73 offen lds" % sr(S_W, 4))
    E("v_lshrrev_b32 v6, 5, v1"); E("v_bfe_u32 v7, v1, 2, 2"); E("v_lshl_add_u32 v6, v6, 2, v7"); E("v_mul_u32_u24 v6, 896, v6")
    E("v_bfe_u32 v7, v1, 4, 1"); E("v_lshl_add_u32 v6, v7, 5, v6"); E("v_and_b32 v7, 3, v1"); E("v_lshl_add_u32 v6, v7, 3, v6")
    E("v_add_u32 v6, s72, v6"); E("s_lshl_b32 s71, s65, 10"); E("s_add_u32 s71, s71, %d" % WB0)
    E("s_waitcnt vmcnt(0)")
    for nb in range(14):
        E("ds_read_b64_tr_b16 %s, v6 offset:%d" % (vr(64 + 4 * nb, 2), nb * 64))
        E("ds_read_b64_tr_b16 %s, v6 offset:%d" % (vr(66 + 4 * nb, 2), nb * 64 + 8 * 896))
    E("s_waitcnt lgkmcnt(0)")
    for nb in range(14):
        E("buffer_store_dwordx4 %s, v5, %s, s71 offen sc1" % (vr(64 + 4 * nb, 4), sr(S_WS, 4))); E("s_add_u32 s71, s71, %d" % (NKS * 1024))
    E("s_branch K1_PG")
    L("K1_PC")
    E("s_sub_u32 s66, s65, 112"); E("s_lshr_b32 s67, s66, 3"); E("s_bfe_u32 s68, s66, 0x10002"); E("s_and_b32 s69, s66, 3")
    E("s_cmp_eq_u32 s68, 0")
    E("s_cselect_b32 s%d, s%d, s%d" % (S_B, P_CRE, P_CIM)); E("s_cselect_b32 s%d, s%d, s%d" % (S_B + 1, P_CRE + 1, P_CIM + 1))
    E("s_and_b32 s%d, s%d, 0xffff" % (S_B + 1, S_B + 1)); E("s_mov_b32 s%d, %d" % (S_B + 2, BN)); E("s_mov_b32 s%d, 0x20000" % (S_B + 3))
    E("v_and_b32 v6, 31, v1"); E("s_lshl_b32 s71, s67, 5"); E("v_add_u32 v6, s71, v6"); E("v_mul_u32_u24 v6, 896, v6")
    E("v_lshrrev_b32 v7, 5, v1"); E("v_lshl_add_u32 v6, v7, 4, v6")
    E("s_mul_i32 s69, s69, 7"); E("s_lshl_b32 s71, s69, 5")
    for i in range(7): E("buffer_load_dwordx4 %s, v6, %s, s71 offen offset:%d" % (vr(64 + 4 * i, 4), sr(S_B, 4), i * 32))
    E("s_mul_i32 s72, s67, %d" % NKS); E("s_lshl_b32 s68, s68, 1"); E("s_add_u32 s72, s72, s68"); E("s_add_u32 s72, s72, %d" % (112 + WB0 // 1024))
    E("s_waitcnt vmcnt(0)")
    for i in range(7):
        E("s_add_u32 s73, s69, %d" % i); E("s_lshr_b32 s74, s73, 1"); E("s_lshl_b32 s74, s74, 2"); E("s_and_b32 s73, s73, 1")
        E("s_add_u32 s73, s73, s74"); E("s_add_u32 s73, s73, s72"); E("s_lshl_b32 s73, s73, 10")
        E("buffer_store_dwordx4 %s, v5, %s, s73 offen sc1" % (vr(64 + 4 * i, 4), sr(S_WS, 4)))
    E("s_branch K1_PG")
    L("K1_PN")
    srd(S_DBG, P_DBG, 256); E("v_mov_b32 v44, 0"); E("s_mov_b32 s71, %d" % FL0)
    E("s_cmp_lg_u32 s2, 224"); E("s_cbranch_scc1 K1_PN1")
    E("buffer_load_dword v42, v44, %s, s71 offen sc1" % sr(S_WS, 4)); E("v_and_b32 v44, 1, v1"); E("v_lshlrev_b32 v44, 7, v44"); E("v_mov_b32 v43, 1")
    E("s_waitcnt vmcnt(0)"); E("v_add_u32 v42, 0x9e3779b9, v42"); E("buffer_store_dwordx2 v[42:43], v44, %s, 0 offen sc1" % sr(S_DBG, 4))
    E("s_branch K1_PN2")
    L("K1_PN1")
    poll(LD_N, "v_cmp_eq_u32 vcc, 1, v43", "-1")
    L("K1_PN2")
    E("v_mov_b32 v123, v42")
    E("s_sub_u32 s38, s2, 224"); E("s_lshl_b32 s38, s38, 2"); E("s_add_u32 s38, s38, %d" % FL0)
    L("K1_PG")
    for i in range(7):
        E("buffer_load_dwordx4 %s, v4, %s, 0 offen offset:%d" % (vr(8 + 4 * i, 4), sr(S_X, 4), i * 128))
        E("buffer_load_dwordx4 %s, v3, %s, 0 offen offset:%d" % (vr(36 + 4 * i, 4), sr(S_T, 4), i * 128))
    E("s_waitcnt vmcnt(14)"); E("s_barrier")
    stamp(4)
    E("s_cmp_lg_u32 s%d, 7" % sW); E("s_cbranch_scc1 K1_PF")
    E("buffer_store_dword v123, v122, %s, s38 offen sc1" % sr(S_WS, 4))
    L("K1_PF")
    E("s_waitcnt vmcnt(0)")
    E("v_mov_b32 v6, 0"); E("v_mov_b32 v7, 0"); E("s_mov_b32 s71, 0xffff0000")
    for i in range(28):
        x, w = 8 + i, 36 + i
        E("v_lshlrev_b32 v124, 16, v%d" % x); E("v_and_b32 v125, s71, v%d" % x); E("v_lshlrev_b32 v126, 16, v%d" % w); E("v_and_b32 v127, s71, v%d" % w)
        E("v_mul_f32 v124, v124, v126"); E("v_mul_f32 v125, v125, v127"); E("v_cvt_pk_bf16_f32 v124, v124, v125")
        E("v_lshlrev_b32 v125, 16, v124"); E("v_and_b32 v124, s71, v124"); E("v_add_f32 v6, v6, v125"); E("v_add_f32 v7, v7, v124")
    E("v_add_f32 v6, v6, v7")
    for o in ("0x041F", "0x081F", "0x101F"):
        E("ds_swizzle_b32 v7, v6 offset:%s" % o); E("s_waitcnt lgkmcnt(0)"); E("v_add_f32 v6, v6, v7")
    E("v_cvt_pk_bf16_f32 v6, v6, v6"); E("v_lshlrev_b32 v6, 16, v6"); E("v_mul_f32 v6, %s, v6" % f2u(-math.log2(math.e)))
    E("v_exp_f32 v6, v6"); E("s_nop 0"); E("v_add_f32 v6, 1.0, v6"); E("v_rcp_f32 v6, v6"); E("s_nop 0")
    E("v_cvt_pk_bf16_f32 v6, v6, v6"); E("v_lshlrev_b32 v6, 16, v6"); E("v_lshlrev_b32 v2, 2, v2"); E("s_mov_b32 s71, %d" % G0)
    E("buffer_store_dword v6, v2, %s, s71 offen sc1" % sr(S_WS, 4))
    E("s_waitcnt vmcnt(0)"); E("s_barrier")
    E("s_cmp_lg_u32 s%d, 7" % sW); E("s_cbranch_scc1 K1_PE")
    E("buffer_store_dword v123, v122, %s, s38 offen offset:1024 sc1" % sr(S_WS, 4))
    L("K1_PE")
    stamp(5); dump_stamps(1 << 25)
    L("K1_END")
    E("s_endpgm")

def p2_main():
    C("phase 2")
    srd(S_T, P_D, 896); srd(S_B, P_OUT, 2048 * 448 * 4)
    E("v_and_b32 v4, 31, v1"); perm(5, 4, 6); E("s_lshl_b32 s73, s94, 6"); E("v_add_lshl_u32 v5, v5, s73, 2"); E("s_mov_b32 s74, %d" % G0)
    E("buffer_load_dword v8, v5, %s, s74 offen sc1" % sr(S_WS, 4)); E("buffer_load_dword v9, v5, %s, s74 offen offset:128 sc1" % sr(S_WS, 4))
    E("v_lshrrev_b32 v4, 4, v1"); E("v_and_b32 v6, 15, v1"); E("s_lshl_b32 s75, s95, 7"); E("v_lshl_add_u32 v7, v6, 3, s75")
    E("buffer_load_dwordx2 v[10:11], v7, %s, 0 offen" % sr(S_T, 4))
    E("s_and_b32 s75, s%d, 3" % sW); E("s_lshl_b32 s75, s75, 2"); E("s_lshr_b32 s76, s%d, 2" % sW); E("s_lshl_b32 s76, s76, 5")
    E("s_add_u32 s75, s75, s76"); E("s_add_u32 s75, s75, s73"); E("v_add_u32 v3, s75, v4")
    E("v_lshlrev_b32 v4, 2, v3"); E("v_mul_u32_u24 v3, 896, v3"); E("v_add_u32 v3, v3, v7"); E("s_movk_i32 s77, %d" % (16 * 896))
    E("buffer_load_dwordx2 v[12:13], v3, %s, 0 offen" % sr(S_X, 4)); E("buffer_load_dwordx2 v[14:15], v3, %s, s77 offen" % sr(S_X, 4))
    E("buffer_load_dword v6, v4, %s, s74 offen sc1" % sr(S_WS, 4)); E("buffer_load_dword v7, v4, %s, s74 offen offset:64 sc1" % sr(S_WS, 4))
    E("s_barrier")
    stamp(6)
    wreg = {i: WSL[i] for i in range(15)}; hreg = {}; order = []
    for i, R in enumerate(HSL): p2_load('H', i, R, 2); hreg[i] = R; order.append(i)
    nh = len(HSL)
    E("s_lshl_b32 s75, s%d, 14" % sW); E("v_add_u32 v5, s75, v2")
    for i in range(21):
        E("s_waitcnt vmcnt(%d)" % (2 * (len(order) - 1 - i)))
        if i == 14:
            E("v_sub_f32 v4, 1.0, v8"); E("v_sub_f32 v5, 1.0, v9"); E("v_cvt_pk_bf16_f32 v4, v4, v5")
            E("v_and_b32 v5, 0xffff0000, v4"); E("v_lshlrev_b32 v4, 16, v4"); E("s_nop 7")
            for k in range(4):
                for r in range(0, 16, 2): E("v_pk_mul_f32 %s, v[4:5], %s %s" % (vr(ACC2 + 16 * k + r, 2), vr(ACC2 + 16 * k + r, 2), "op_sel:[1,0]" if k & 1 else "op_sel_hi:[0,1]"))
            E("s_waitcnt lgkmcnt(0)"); E("s_nop 0")
        for k in range(4):
            A = ACC2 + 16 * k
            E("v_mfma_f32_32x32x16_bf16 %s, %s, %s, %s" % (vr(A, 16), vr(wreg[i] + 4 * (k >> 1), 4), vr(hreg[i] + 4 * (k & 1), 4), vr(A, 16) if i else "0"))
        for R in (hreg[i], wreg[i]):
            if nh < 21: p2_load('H', nh, R, 2); hreg[nh] = R; order.append(nh); nh += 1
        if 8 <= i < 14:
            R = wreg[i - 1]; wreg[i + 7] = R
            for j in range(2): E("ds_read_b128 %s, v5 offset:%d" % (vr(R + 4 * j, 4), (i - 8) * 2048 + j * 1024))
    stamp(7)
    C("partials -> LDS [wave][row 64][256B], chunk ^= row&7")
    E("v_and_b32 v16, 31, v1"); E("v_lshrrev_b32 v17, 5, v1"); E("v_and_b32 v18, 7, v1"); E("v_xor_b32 v17, v17, v18")
    E("s_lshl_b32 s75, s%d, 14" % sW); E("v_lshl_add_u32 v16, v16, 8, s75")
    for q in range(4):
        E("v_xor_b32 v18, %d, v17" % (2 * q)); E("v_lshl_add_u32 v%d, v18, 4, v16" % (20 + q))
    for k in range(4):
        for q in range(4): E("ds_write_b128 v%d, %s offset:%d" % (20 + q, vr(ACC2 + 16 * k + 4 * q, 4), (k & 1) * 8192 + (k >> 1) * 128))
    E("v_lshrrev_b32 v16, 4, v1"); E("s_lshl_b32 s75, s%d, 3" % sW); E("v_add_u32 v16, s75, v16"); E("v_and_b32 v18, 15, v1")
    for i in range(2):
        E("v_add_u32 v17, %d, v16" % (4 * i)); E("v_and_b32 v19, 7, v17"); E("v_xor_b32 v19, v19, v18"); E("v_lshlrev_b32 v19, 4, v19")
        E("v_lshl_add_u32 v%d, v17, 8, v19" % (24 + i)); E("v_add_u32 v%d, 65536, v%d" % (26 + i, 24 + i))
    E("v_lshlrev_b32 v3, 1, v3")
    E("v_lshlrev_b32 v16, 16, v10"); E("v_and_b32 v17, 0xffff0000, v10"); E("v_lshlrev_b32 v18, 16, v11"); E("v_and_b32 v19, 0xffff0000, v11")
    for i in range(2):
        x0, x1, S = 12 + 2 * i, 13 + 2 * i, 28 + 4 * i
        E("v_lshlrev_b32 v%d, 16, v%d" % (S, x0)); E("v_and_b32 v%d, 0xffff0000, v%d" % (S + 1, x0))
        E("v_lshlrev_b32 v%d, 16, v%d" % (S + 2, x1)); E("v_and_b32 v%d, 0xffff0000, v%d" % (S + 3, x1))
        for r in range(4): E("v_mul_f32 v%d, v%d, v%d" % (S + r, S + r, 16 + r))
        E("v_cvt_pk_bf16_f32 v%d, v%d, v%d" % (x0, S, S + 1)); E("v_cvt_pk_bf16_f32 v%d, v%d, v%d" % (x1, S + 2, S + 3))
        E("v_lshlrev_b32 v%d, 16, v%d" % (S, x0)); E("v_and_b32 v%d, 0xffff0000, v%d" % (S + 1, x0))
        E("v_lshlrev_b32 v%d, 16, v%d" % (S + 2, x1)); E("v_and_b32 v%d, 0xffff0000, v%d" % (S + 3, x1))
        for r in range(4): E("v_mul_f32 v%d, v%d, v%d" % (S + r, S + r, 6 + i))
    E("s_waitcnt lgkmcnt(0)"); E("s_barrier")
    for i in range(2):
        for sw in range(8): E("ds_read_b128 %s, v%d offset:%d" % (vr(48 + 32 * i + 4 * sw, 4), (24 if sw < 4 else 26) + i, (sw & 3) * 16384))
    for i in range(2):
        B, S = 48 + 32 * i, 28 + 4 * i
        for sw in range(8):
            if sw % 2 == 0: E("s_waitcnt lgkmcnt(%d)" % (14 - 8 * i - sw))
            for r in (0, 2): E("v_pk_add_f32 %s, %s, %s" % (vr(S + r, 2), vr(S + r, 2), vr(B + 4 * sw + r, 2)))
        E("s_mov_b32 s77, %d" % (i * 16 * 1792))
        E("buffer_store_dwordx4 %s, v3, %s, s77 offen" % (vr(S, 4), sr(S_B, 4)))
    stamp(8); dump_stamps(1 << 25)
    E("s_endpgm")

def desc(name, vg, acc):
    return [".p2align 6", ".amdhsa_kernel %s" % name, "  .amdhsa_next_free_vgpr %d" % vg, "  .amdhsa_next_free_sgpr 96",
            "  .amdhsa_accum_offset %d" % acc, "  .amdhsa_group_segment_fixed_size 0", "  .amdhsa_kernarg_size 136",
            "  .amdhsa_user_sgpr_count 2", "  .amdhsa_user_sgpr_kernarg_segment_ptr 1", "  .amdhsa_system_sgpr_workgroup_id_x 1",
            ".end_amdhsa_kernel"]
hdr = [l.rstrip("\n") for l in open("cdna_kernels/%s.s.ref" % NAME) if l.startswith(";   offset") or l.startswith("; Kernarg")]
KN = NAME + "_kernel"
hdr += ["; @launch grid=(256,1,1) block=(512,1,1) lds=163840", '.amdgcn_target "amdgcn-amd-amdhsa--gfx950"', ".text"]
k1()
body = [".globl %s" % KN, ".p2align 8", ".type %s,@function" % KN] + list(out)
tail = ['.section .rodata,"a"'] + desc(KN, 256, 256)
open(sys.argv[1], "w").write("\n".join(hdr + body + tail) + "\n")
```

```python
import sys, struct, math
NAME = "gated_mix__ssm_conv_s5__glu_gated_geglu__prompt"
OPT = dict(PRIO=0, PRE=0, ROT=1, PACE=1, EARLY=1, NS=14, M16=0, TWICE=0, NOMMA=0, NODMA=0, NOLDS=0, D2=8, MAP1="4x7", STAMP=0)
for a in sys.argv[2:]:
    k, v = a.split("="); OPT[k] = int(v) if v.lstrip("-").isdigit() else v
out = []
def E(s): out.append("    " + s)
def L(s): out.append(s + ":")
def C(s): out.append("    ; " + s)
def f2u(x): return "0x%08x" % struct.unpack("<I", struct.pack("<f", x))[0]
def vr(b, n=1): return "v%d" % b if n == 1 else "v[%d:%d]" % (b, b + n - 1)
def ar(b, n=1): return "a%d" % b if n == 1 else "a[%d:%d]" % (b, b + n - 1)
def sr(b, n=1): return "s%d" % b if n == 1 else "s[%d:%d]" % (b, b + n - 1)
def srd(d, p, nbytes):
    E("s_mov_b32 s%d, s%d" % (d, p)); E("s_and_b32 s%d, s%d, 0xffff" % (d + 1, p + 1))
    E("s_mov_b32 s%d, %d" % (d + 2, nbytes)); E("s_mov_b32 s%d, 0x20000" % (d + 3))
NKS = 168
HA0 = 0; HA_SZ = 64 * NKS * 1024
WB0 = HA_SZ; WB_SZ = 14 * NKS * 1024
G0 = WB0 + WB_SZ; E0 = G0 + 8192; FL0 = E0 + 14 * 16 * 512; WS_SZ = FL0 + 4096; NLO = 157696
XN = 2048 * 448 * 2; BN = 448 * 448 * 2; WN = 448 * 1792 * 2
P_X, P_LRE, P_LIM, P_BRE, P_BIM, P_CRE, P_CIM, P_LDT = 4, 6, 8, 10, 12, 14, 16, 18
P_D, P_BX, P_WG, P_WU, P_WD, P_GW, P_OUT, P_DBG, P_WS = 20, 22, 24, 26, 28, 30, 32, 34, 36
def load_args():
    E("s_load_dwordx16 s[4:19], s[0:1], 0"); E("s_load_dwordx16 s[20:35], s[0:1], 64")
    E("s_load_dwordx2 s[36:37], s[0:1], 128")
def perm(dst, r, t1):
    E("v_and_b32 %s, 3, %s" % (vr(dst), vr(r)))
    E("v_lshrrev_b32 %s, 3, %s" % (vr(t1), vr(r)))
    E("v_lshl_add_u32 %s, %s, 2, %s" % (vr(dst), vr(t1), vr(dst)))
    E("v_bfe_u32 %s, %s, 2, 1" % (vr(t1), vr(r)))
    E("v_lshl_add_u32 %s, %s, 4, %s" % (vr(dst), vr(t1), vr(dst)))
def cmul(dr, di, ar_, ai, br, bi):
    E("v_mul_f32 %s, %s, %s" % (vr(dr), vr(ar_), vr(br))); E("v_mul_f32 %s, %s, %s" % (vr(di), vr(ar_), vr(bi)))
    E("v_fma_f32 %s, -%s, %s, %s" % (vr(dr), vr(ai), vr(bi), vr(dr))); E("v_fma_f32 %s, %s, %s, %s" % (vr(di), vr(ai), vr(br), vr(di)))
def cfma(dr, di, lr, li, hr, hi, ur, ui):
    E("v_fma_f32 %s, %s, %s, %s" % (vr(dr), vr(lr), vr(hr), vr(ur))); E("v_fma_f32 %s, %s, %s, %s" % (vr(di), vr(lr), vr(hi), vr(ui)))
    E("v_fma_f32 %s, -%s, %s, %s" % (vr(dr), vr(li), vr(hi), vr(dr))); E("v_fma_f32 %s, %s, %s, %s" % (vr(di), vr(li), vr(hr), vr(di)))
def stamp(slot):
    if OPT["STAMP"]:
        E("s_memrealtime s[90:91]"); E("s_waitcnt lgkmcnt(0)"); E("v_writelane_b32 v0, s90, %d" % slot)
        if slot in (1, 2): E("s_memtime s[90:91]"); E("s_waitcnt lgkmcnt(0)"); E("v_writelane_b32 v0, s90, %d" % (slot + 10))

S_X, S_B, S_W, S_WS, S_DBG, S_T = 40, 44, 48, 52, 56, 60
sW, sRT, sCG, sTA, sM1, sM2, sM3 = 64, 65, 66, 67, 68, 69, 70
XBS = [0, 24576, 49152]; WS0 = 73728; EXO = 155648; TRO = 131072
vL, vXD0, vXD1, vBD, vWD = 1, 2, 3, 4, 5
vXA, vXB, vBA, vWA0, vWA1 = 6, 10, 14, 18, 19
vLR, vLI, vCR, vCI, vL16R, vL16I, vL128R, vL128I = 20, 21, 22, 23, 24, 25, 26, 27
vT = 28
FR = [48, 72]
AG = [96, 112]; AU = [128, 144]; ASR, ASI = 160, 176
vEE = 48
vEC = 64
def dma_group(j):
    if j > 13 or (OPT["NODMA"] and j > 3): return
    if j % 2 == 0:
        st = j // 2; slot = XBS[st % 3]
        E("s_mov_b32 s71, %d" % (st * 128))
        E("s_add_u32 m0, s%d, %d" % (sM1, slot)); E("s_nop 0")
        E("buffer_load_dwordx4 %s, %s, s71 offen lds" % (vr(vXD0), sr(S_X, 4)))
        E("s_add_u32 m0, s%d, %d" % (sM1, slot + 1024)); E("s_nop 0")
        E("buffer_load_dwordx4 %s, %s, s71 offen lds" % (vr(vXD1), sr(S_X, 4)))
        E("s_add_u32 m0, s%d, %d" % (sM2, slot + 16384)); E("s_nop 0")
        E("buffer_load_dwordx4 %s, %s, s71 offen lds" % (vr(vBD), sr(S_B, 4)))
    for m in range(2):
        E("s_mov_b32 s71, %d" % ((32 * j + 4 * m) * 3584))
        E("s_add_u32 m0, s%d, %d" % (sM1, WS0 + (j % 5) * 16384 + m * 1024)); E("s_nop 0")
        E("buffer_load_dwordx4 %s, %s, s71 offen lds" % (vr(vWD), sr(S_W, 4)))
def dma_part(j, part):
    save = list(out); del out[:]; dma_group(0); g = list(out); out[:] = save
    rng = {0: g[0:4], 1: g[0:1] + g[4:7], 2: g[0:1] + g[7:10], 3: g[10:]}[part]
    out.extend(rng)
def gsize(j): return 0 if j > 13 else (5 if j % 2 == 0 else 2)
def frag_reads(n, ssm):
    F = FR[n & 1]; xs = XBS[(n // 4) % 3]; ks = n % 4; i = n // 2; wsl = i % 5
    wa = vWA0 if wsl < 3 else vWA1; wo = (wsl if wsl < 3 else wsl - 3) * 16384 + (n & 1) * 4096
    r = []
    r.append("ds_read_b64_tr_b16 %s, %s offset:%d" % (vr(F + 8, 2), vr(wa), wo))
    r.append("ds_read_b64_tr_b16 %s, %s offset:%d" % (vr(F + 10, 2), vr(wa), wo + 1024))
    r.append("ds_read_b128 %s, %s offset:%d" % (vr(F, 4), vr(vXA + ks), xs))
    r.append("ds_read_b128 %s, %s offset:%d" % (vr(F + 4, 4), vr(vXB + ks), xs))
    r.append("ds_read_b64_tr_b16 %s, %s offset:%d" % (vr(F + 12, 2), vr(wa), wo + 8192))
    r.append("ds_read_b64_tr_b16 %s, %s offset:%d" % (vr(F + 14, 2), vr(wa), wo + 8192 + 1024))
    if ssm:
        r.append("ds_read_b128 %s, %s offset:%d" % (vr(F + 16, 4), vr(vBA + ks), xs))
        r.append("ds_read_b128 %s, %s offset:%d" % (vr(F + 20, 4), vr(vBA + ks), xs + 4096))
    return r
def mfmas(n, ssm):
    F = FR[n & 1]
    def m(d, a, b): return "v_mfma_f32_32x32x16_bf16 %s, %s, %s, %s" % (vr(d, 16), vr(a, 4), vr(b, 4), vr(d, 16) if n else "0")
    r = [m(AG[0], F + 8, F), m(AG[1], F + 8, F + 4), m(AU[0], F + 12, F), m(AU[1], F + 12, F + 4)]
    if ssm: r += [m(ASR, F, F + 16), m(ASI, F, F + 20)]
    return r
def w4_check(cmp_, tag, post=None):
    E("s_cmp_lg_u32 s%d, 4" % sW); E("s_cbranch_scc1 CKR" + tag)
    E(cmp_); E("s_nop 4"); E("s_cmp_eq_u32 vcc_lo, -1"); E("s_cbranch_scc0 CKS" + tag); L("CKD" + tag)
    if post: post()
    L("CKR" + tag)
def nonce_post():
    E("v_readfirstlane_b32 s38, v42"); E("v_mov_b32 v44, %d" % NLO); E("v_mov_b32 v43, 0"); E("ds_write_b64 v44, v[42:43]")
LD_N = "buffer_load_dwordx2 v[42:43], v44, %s, 0 offen sc1" % sr(S_DBG, 4)
LD_W = "buffer_load_dword v47, v45, %s, 0 offen sc1" % sr(S_WS, 4)
LD_G = "buffer_load_dword v47, v45, %s, 0 offen offset:1024 sc1" % sr(S_WS, 4)
def main_loop(ssm):
    q = []
    for j in range(4): q.extend([j] * gsize(j))
    def cnt(g): return len(q) - 1 - max(k for k, t in enumerate(q) if t == g)
    NS = OPT["NS"]; NC = NS + 6
    wl = [(i, j) for i in range(8 if ssm else 12) for j in range(2)]
    per = -(-len(wl) // (28 - NC))
    E("s_waitcnt vmcnt(%d)" % cnt(0)); E("s_barrier")
    for s in frag_reads(0, ssm): E(s)
    for n in range(28):
        if n % 2 == 0 and n < 26:
            E("s_waitcnt vmcnt(%d) lgkmcnt(0)" % cnt(n // 2 + 1))
            if n == NC and not ssm: w4_check("v_cmp_eq_u32 vcc, s38, v47", "W")
            E("s_barrier")
            if n == 8 and not ssm: w4_check("v_cmp_eq_u32 vcc, 1, v43", "N", nonce_post)
        else:
            E("s_waitcnt lgkmcnt(0)")
        ms = mfmas(n, ssm); rs = frag_reads(n + 1, ssm) if n < 27 else []
        for k, mm in enumerate(ms):
            E(mm)
            for s in rs[2 * k:2 * k + 2]: E(s)
            if k == 3 and not ssm and n in (2, NS, max(22, NC)): E({2: LD_N, NS: LD_W, max(22, NC): LD_G}[n]); q.append('p')
            if k == 3 and n % 2 == 0: dma_group(n // 2 + 4); q.extend([n // 2 + 4] * gsize(n // 2 + 4))
            if k == 3 and n >= NC:
                for (i, j) in wl[:per]: p2_load('W', i, WSL[i], vP2W, j); q.append('w')
                wl = wl[per:]
    assert not wl
    return cnt('p') if not ssm else 0
def spins():
    for tag, ld, c in (("N", LD_N, "v_cmp_eq_u32 vcc, 1, v43"), ("W", LD_W, "v_cmp_eq_u32 vcc, s38, v47"), ("G", LD_G, "v_cmp_eq_u32 vcc, s38, v47")):
        L("CKS" + tag); poll(ld, c, "-1"); E("s_branch CKD" + tag)
SC = " sc1"
def gelu_calc(t, extra=None):
    g, u = AG[t], AU[t]
    for r0 in range(0, 16, 4):
        T = vT
        if extra:
            for _ in range(3): lds_w(*extra.pop(0))
        P = lambda b: vr(b, 2)
        for i in (0, 2): E("v_pk_mul_f32 %s, %s, %s" % (P(T + i), P(g + r0 + i), P(g + r0 + i)))
        for i in (0, 2): E("v_pk_fma_f32 %s, %s, s[72:73], %s op_sel_hi:[1,0,0]" % (P(T + i), P(T + i), P(T + 8)))
        for i in (0, 2): E("v_pk_mul_f32 %s, %s, %s" % (P(T + i), P(T + i), P(g + r0 + i)))
        for i in range(4): E("v_exp_f32 %s, %s" % (vr(T + i), vr(T + i)))
        for i in (0, 2): E("v_pk_mul_f32 %s, %s, %s" % (P(T + 4 + i), P(g + r0 + i), P(u + r0 + i)))
        for i in (0, 2): E("v_pk_add_f32 %s, %s, s[30:31] op_sel_hi:[1,0]" % (P(T + i), P(T + i)))
        for i in range(4): E("v_rcp_f32 %s, %s" % (vr(T + i), vr(T + i)))
        for i in (0, 2): E("v_pk_mul_f32 %s, %s, %s" % (P(T + i), P(T + i), P(T + 4 + i)))
        for i in range(2): E("v_cvt_pk_bf16_f32 %s, %s, %s" % (vr(g + r0 // 2 + i), vr(T + 2 * i), vr(T + 2 * i + 1)))
def gelu_st(t):
    g = AG[t]
    E("buffer_store_dwordx4 %s, %s, %s, s%d offen%s" % (vr(g, 4), vr(vT + 9), sr(S_WS, 4), 73 + t, SC))
    E("buffer_store_dwordx4 %s, %s, %s, s%d offen offset:1024%s" % (vr(g + 4, 4), vr(vT + 9), sr(S_WS, 4), 73 + t, SC))
WSL = [192, 200, 208, 216, 224, 232, 240, 248, 160, 168, 176, 184, 72, 80, 88]
HSL = [16, 24, 32, 40, 48, 56, 64]
ACC2 = 96
vP2W = 46
def p2_ks(i): return i if i < 14 else i - 14
def p2_load(kind, i, R, va, only=None):
    base = (82 if kind == 'W' else 86) + (0 if i < 14 else 2)
    for j in range(2):
        if only is not None and j != only: continue
        E("s_add_u32 s93, s%d, s%d" % (base + j, ROTS[i]))
        E("buffer_load_dwordx4 %s, v%d, %s, s93 offen" % (vr(R + 4 * j, 4), va, sr(S_WS, 4)))
ROTS = list(range(4, 20)) + list(range(22, 27))
def lds_w(i, j, va, other):
    E("s_add_u32 m0, s%d, %d" % (27 + other, (i - 15) * 2048 + j * 1024)); E("s_add_u32 s93, s%d, s%d" % (84 + j, ROTS[i]))
    if other: E("s_sub_u32 s93, s93, %d" % (4 * 7 * 1024))
    E("buffer_load_dwordx4 v%d, %s, s93 offen lds" % (va, sr(S_WS, 4)))
def p2_setup():
    if OPT["MAP1"] == "4x7":
        E("s_cmp_ge_u32 s%d, 7" % sCG); E("s_cselect_b32 s94, 1, 0"); E("s_mul_i32 s95, s94, 7"); E("s_sub_u32 s95, s%d, s95" % sCG)
    else:
        E("s_and_b32 s94, s%d, 1" % sCG); E("s_lshr_b32 s95, s%d, 1" % sCG)
    E("s_lshl_b32 s71, s%d, 1" % sRT); E("s_add_u32 s94, s94, s71")
    E("s_mul_i32 s71, s%d, %d" % (sW, 14 * 1024)); E("s_mul_i32 s75, s%d, %d" % (sW, 7 * 1024)); E("s_add_u32 s75, s75, %d" % (112 * 1024))
    E("s_mul_i32 s77, s95, %d" % (2 * NKS * 1024)); E("s_add_u32 s77, s77, %d" % WB0)
    E("s_add_u32 s82, s77, s71"); E("s_add_u32 s83, s82, %d" % (NKS * 1024)); E("s_add_u32 s84, s77, s75"); E("s_add_u32 s85, s84, %d" % (NKS * 1024))
    E("s_mul_i32 s77, s94, %d" % (2 * NKS * 1024))
    E("s_add_u32 s86, s77, s71"); E("s_add_u32 s87, s86, %d" % (NKS * 1024)); E("s_add_u32 s88, s77, s75"); E("s_add_u32 s89, s88, %d" % (NKS * 1024))
    r = OPT["ROT"]
    E("s_mul_i32 s4, s95, %d" % (2048 * r)); E("s_mul_i32 s18, s95, %d" % (1024 * r))
    for i in range(1, 21):
        if i == 14: continue
        E("s_add_u32 s%d, s%d, 1024" % (ROTS[i], ROTS[i - 1])); E("s_cmp_eq_u32 s%d, %d" % (ROTS[i], 14336 if i < 14 else 7168))
        E("s_cselect_b32 s%d, 0, s%d" % (ROTS[i], ROTS[i]))
    E("s_lshl_b32 s27, s%d, 14" % sW); E("s_sub_u32 s28, s27, 65536")
npoll = [0]
def poll(ld, cmp_, mlo):
    n = npoll[0]; npoll[0] += 1
    E("s_mov_b32 s81, 0")
    L("POLL%d" % n)
    E(ld); E("s_waitcnt vmcnt(0)"); E(cmp_); E("s_nop 4")
    E("s_andn2_b32 s71, %s, vcc_lo" % mlo); E("s_cbranch_scc0 POLLD%d" % n)
    E("s_add_u32 s81, s81, 1"); E("s_cmp_gt_u32 s81, 0x10000"); E("s_cbranch_scc1 POLLD%d" % n)
    E("s_sleep 1"); E("s_branch POLL%d" % n)
    L("POLLD%d" % n)
def gelu_setup():
    c0 = -2.0 * math.log2(math.e) * math.sqrt(2.0 / math.pi)
    E("s_mov_b32 s30, 1.0"); E("s_mov_b32 s72, %s" % f2u(c0 * 0.044715)); E("v_mov_b32 %s, %s" % (vr(vT + 8), f2u(c0)))
    E("v_lshlrev_b32 %s, 4, %s" % (vr(vT + 9), vr(vL)))
    E("s_lshl_b32 s75, s%d, 2" % sRT); E("s_add_u32 s73, s75, s%d" % sTA); E("s_xor_b32 s74, s73, 1")
    E("s_mul_i32 s73, s73, %d" % (NKS * 1024)); E("s_mul_i32 s74, s74, %d" % (NKS * 1024))
    E("s_lshl_b32 s75, s%d, 13" % sCG); E("s_lshr_b32 s76, s%d, 1" % sW); E("s_lshl_b32 s76, s76, 11")
    E("s_add_u32 s75, s75, s76"); E("s_add_u32 s76, s73, %d" % (112 * 1024))
    E("s_add_u32 s73, s73, s75"); E("s_add_u32 s74, s74, s75")
    E("s_lshl_b32 s75, s%d, 12" % sCG); E("s_add_u32 s76, s76, s75")
def dump_stamps(base):
    if OPT["STAMP"]:
        E("s_lshl_b32 s92, s2, 3"); E("s_add_u32 s92, s92, s%d" % sW); E("s_lshl_b32 s92, s92, 8"); E("s_add_u32 s92, s92, %d" % base)
        E("s_mov_b32 s%d, %d" % (S_WS + 2, 1 << 26)); E("v_lshlrev_b32 v1, 2, v%d" % vL)
        E("buffer_store_dword v0, v1, %s, s92 offen" % sr(S_WS, 4))

def k1():
    L(NAME + "_kernel")
    E("s_cmp_ge_u32 s2, 256"); E("s_cbranch_scc1 K1_END")
    E("s_add_u32 s2, s2, 224"); E("s_and_b32 s2, s2, 255")
    load_args()
    E("v_lshrrev_b32 v2, 6, v0"); E("v_and_b32 v%d, 63, v0" % vL); E("v_readfirstlane_b32 s%d, v2" % sW)
    if OPT["STAMP"]: E("s_nop 1"); E("v_mov_b32 v0, 0")
    E("s_waitcnt lgkmcnt(0)")
    stamp(0)
    srd(S_X, P_X, XN); srd(S_WS, P_WS, WS_SZ)
    E("s_cmp_ge_u32 s2, 224"); E("s_cbranch_scc1 K1_PREP")
    E("s_and_b32 s71, s2, 7"); E("s_lshr_b32 s72, s2, 3")
    if OPT["MAP1"] == "4x7":
        E("s_lshr_b32 s73, s71, 1"); E("s_lshl_b32 s73, s73, 2"); E("s_and_b32 s74, s72, 3"); E("s_add_u32 s%d, s73, s74" % sRT)
        E("s_and_b32 s73, s71, 1"); E("s_mul_i32 s73, s73, 7"); E("s_lshr_b32 s74, s72, 2"); E("s_add_u32 s%d, s73, s74" % sCG)
    else:
        E("s_lshl_b32 s73, s71, 1"); E("s_and_b32 s74, s72, 1"); E("s_add_u32 s%d, s73, s74" % sRT); E("s_lshr_b32 s%d, s72, 1" % sCG)
    E("s_cmp_lt_u32 s%d, 4" % sW)
    E("s_cselect_b32 s%d, s%d, s%d" % (S_B, P_BRE, P_BIM)); E("s_cselect_b32 s%d, s%d, s%d" % (S_B + 1, P_BRE + 1, P_BIM + 1))
    E("s_cselect_b32 s%d, s%d, s%d" % (S_W, P_WG, P_WU)); E("s_cselect_b32 s%d, s%d, s%d" % (S_W + 1, P_WG + 1, P_WU + 1))
    E("s_and_b32 s%d, s%d, 0xffff" % (S_B + 1, S_B + 1)); E("s_mov_b32 s%d, %d" % (S_B + 2, BN)); E("s_mov_b32 s%d, 0x20000" % (S_B + 3))
    E("s_and_b32 s%d, s%d, 0xffff" % (S_W + 1, S_W + 1)); E("s_mov_b32 s%d, %d" % (S_W + 2, WN)); E("s_mov_b32 s%d, 0x20000" % (S_W + 3))
    E("s_lshl_b32 s%d, s%d, 11" % (sM1, sW)); E("s_lshl_b32 s%d, s%d, 10" % (sM2, sW))
    E("s_and_b32 s71, s%d, 1" % sW); E("s_lshl_b32 s71, s71, 1"); E("s_bfe_u32 s72, s%d, 0x10001" % sW); E("s_add_u32 s%d, s71, s72" % sTA)
    T = vT
    C("DMA source offsets")
    E("s_movk_i32 s77, 896"); E("s_and_b32 s72, s%d, 3" % sW)
    E("v_lshrrev_b32 %s, 4, %s" % (vr(T), vr(vL))); E("v_and_b32 %s, 15, %s" % (vr(T + 1), vr(vL)))
    E("v_lshlrev_b32 %s, 2, %s" % (vr(T + 2), vr(T))); E("v_xor_b32 %s, %s, %s" % (vr(T + 1), vr(T + 1), vr(T + 2)))
    E("v_mul_u32_u24 %s, 3584, %s" % (vr(T), vr(T))); E("v_lshl_add_u32 %s, %s, 4, %s" % (vr(T), vr(T + 1), vr(T)))
    E("s_mul_i32 s71, s72, %d" % (8 * 3584)); E("s_lshl_b32 s73, s%d, 8" % sCG); E("s_add_u32 s71, s71, s73")
    E("v_add_u32 %s, s71, %s" % (vr(vWD), vr(T)))
    dma_part(0, 3)
    for m, dst in ((0, vXD0), (1, vXD1)):
        E("v_lshrrev_b32 %s, 3, %s" % (vr(T), vr(vL)))
        E("s_lshl_b32 s71, s%d, 4" % sW); E("s_add_u32 s71, s71, %d" % (8 * m)); E("v_add_u32 %s, s71, %s" % (vr(T), vr(T)))
        E("v_and_b32 %s, 31, %s" % (vr(T + 1), vr(T)))
        perm(T + 2, T + 1, T + 3)
        E("v_and_b32 %s, 96, %s" % (vr(T), vr(T))); E("v_add_u32 %s, %s, %s" % (vr(T), vr(T), vr(T + 2)))
        E("s_lshl_b32 s71, s%d, 7" % sRT); E("v_add_u32 %s, s71, %s" % (vr(T), vr(T)))
        E("v_mul_lo_u32 %s, %s, s77" % (vr(T), vr(T)))
        E("v_bfe_u32 %s, %s, 1, 3" % (vr(T + 1), vr(T + 1))); E("v_and_b32 %s, 7, %s" % (vr(T + 2), vr(vL)))
        E("v_xor_b32 %s, %s, %s" % (vr(T + 1), vr(T + 1), vr(T + 2))); E("v_lshl_add_u32 %s, %s, 4, %s" % (vr(dst), vr(T + 1), vr(T)))
        dma_part(0, m)
    E("v_lshrrev_b32 %s, 3, %s" % (vr(T), vr(vL))); E("s_and_b32 s72, s%d, 3" % sW); E("s_lshl_b32 s71, s72, 3")
    E("v_add_u32 %s, s71, %s" % (vr(T), vr(T))); E("v_bfe_u32 %s, %s, 1, 3" % (vr(T + 1), vr(T)))
    E("s_lshl_b32 s71, s%d, 5" % sCG); E("v_add_u32 %s, s71, %s" % (vr(T), vr(T))); E("v_mul_lo_u32 %s, %s, s77" % (vr(T), vr(T)))
    E("v_xor_b32 %s, %s, %s" % (vr(T + 1), vr(T + 1), vr(T + 2))); E("v_lshl_add_u32 %s, %s, 4, %s" % (vr(vBD), vr(T + 1), vr(T)))
    dma_part(0, 2)
    C("SSM parameter loads (p = cg*32 + (l&31))")
    E("v_and_b32 %s, 31, %s" % (vr(T), vr(vL))); E("s_lshl_b32 s71, s%d, 5" % sCG)
    E("v_add_lshl_u32 %s, %s, s71, 1" % (vr(T + 10), vr(T)))
    for p, d in ((P_LRE, T + 11), (P_LIM, T + 12), (P_LDT, T + 13)):
        E("global_load_ushort %s, %s, %s" % (vr(d), vr(T + 10), sr(p, 2)))
    for j in range(1, 4): dma_group(j)
    C("LDS fragment read addresses")
    E("v_lshrrev_b32 %s, 5, %s" % (vr(T + 1), vr(vL))); E("v_bfe_u32 %s, %s, 1, 3" % (vr(T + 2), vr(T)))
    E("s_lshl_b32 s71, s%d, 12" % sTA); E("s_xor_b32 s72, s71, 4096")
    for ks in range(4):
        E("v_add_u32 %s, %d, %s" % (vr(T + 3), 2 * ks, vr(T + 1))); E("v_xor_b32 %s, %s, %s" % (vr(T + 3), vr(T + 3), vr(T + 2)))
        E("v_lshlrev_b32 %s, 4, %s" % (vr(T + 3), vr(T + 3))); E("v_lshl_add_u32 %s, %s, 7, %s" % (vr(T + 3), vr(T), vr(T + 3)))
        E("v_add_u32 %s, s71, %s" % (vr(vXA + ks), vr(T + 3))); E("v_add_u32 %s, s72, %s" % (vr(vXB + ks), vr(T + 3)))
        E("v_add_u32 %s, 16384, %s" % (vr(vBA + ks), vr(T + 3)))
    E("v_bfe_u32 %s, %s, 2, 2" % (vr(T + 2), vr(vL)))
    E("v_lshl_add_u32 %s, %s, 3, %s" % (vr(T + 3), vr(T + 1), vr(T + 2)))
    E("v_lshlrev_b32 %s, 8, %s" % (vr(T + 3), vr(T + 3))); E("s_lshr_b32 s71, s%d, 1" % sW)
    E("v_xor_b32 %s, s71, %s" % (vr(T + 2), vr(T + 2))); E("v_lshl_add_u32 %s, %s, 6, %s" % (vr(T + 3), vr(T + 2), vr(T + 3)))
    E("v_bfe_u32 %s, %s, 4, 1" % (vr(T + 2), vr(vL))); E("v_lshl_add_u32 %s, %s, 5, %s" % (vr(T + 3), vr(T + 2), vr(T + 3)))
    E("v_and_b32 %s, 3, %s" % (vr(T + 2), vr(vL))); E("v_lshl_add_u32 %s, %s, 3, %s" % (vr(T + 3), vr(T + 2), vr(T + 3)))
    E("v_add_u32 %s, %d, %s" % (vr(vWA0), WS0, vr(T + 3))); E("v_add_u32 %s, %d, %s" % (vr(vWA1), WS0 + 49152, vr(T + 3)))
    srd(S_DBG, P_DBG, 256); p2_setup()
    E("s_and_b32 s71, s2, 7"); E("s_lshl_b32 s71, s71, 7"); E("s_add_u32 s71, s71, %d" % FL0); E("s_lshl_b32 s72, s2, 7"); E("s_and_b32 s72, s72, 128")
    E("s_cmp_eq_u32 s%d, 4" % sW); E("s_cselect_b32 s71, s71, 0x7f000000"); E("s_cselect_b32 s72, s72, 0x7f000000")
    E("v_and_b32 v45, 31, v%d" % vL); E("v_lshl_add_u32 v45, v45, 2, s71"); E("v_mov_b32 v44, s72"); E("v_lshlrev_b32 v%d, 4, v%d" % (vP2W, vL))
    E("s_cmp_ge_u32 s%d, 4" % sW); E("s_cbranch_scc1 K1_PLAIN")
    E("s_waitcnt vmcnt(9)")
    a, b, d = T + 11, T + 12, T + 13
    for r in (a, b, d): E("v_lshlrev_b32 %s, 16, %s" % (vr(r), vr(r)))
    E("v_mul_f32 %s, %s, %s" % (vr(d), f2u(math.log2(math.e)), vr(d))); E("v_exp_f32 %s, %s" % (vr(d), vr(d))); E("s_nop 0")
    E("v_cvt_pk_bf16_f32 %s, %s, %s" % (vr(d), vr(d), vr(d))); E("v_lshlrev_b32 %s, 16, %s" % (vr(d), vr(d)))
    E("v_mul_f32 %s, %s, %s" % (vr(T), vr(d), vr(a))); E("v_mul_f32 %s, %s, %s" % (vr(T + 1), vr(d), vr(b)))
    E("v_mul_f32 %s, %s, %s" % (vr(T), f2u(math.log2(math.e)), vr(T))); E("v_mul_f32 %s, %s, %s" % (vr(T + 1), f2u(0.5 / math.pi), vr(T + 1)))
    E("v_rndne_f32 %s, %s" % (vr(T + 2), vr(T + 1))); E("v_sub_f32 %s, %s, %s" % (vr(T + 1), vr(T + 1), vr(T + 2)))
    E("v_exp_f32 %s, %s" % (vr(T), vr(T))); E("v_cos_f32 %s, %s" % (vr(T + 2), vr(T + 1))); E("v_sin_f32 %s, %s" % (vr(T + 3), vr(T + 1))); E("s_nop 0")
    E("v_mul_f32 %s, %s, %s" % (vr(vLR), vr(T), vr(T + 2))); E("v_mul_f32 %s, %s, %s" % (vr(vLI), vr(T), vr(T + 3)))
    C("coef = 2*(lam-1)/Lam")
    E("v_add_f32 %s, -1.0, %s" % (vr(T), vr(vLR))); E("v_mul_f32 %s, %s, %s" % (vr(T + 1), vr(a), vr(a)))
    E("v_fma_f32 %s, %s, %s, %s" % (vr(T + 1), vr(b), vr(b), vr(T + 1))); E("v_rcp_f32 %s, %s" % (vr(T + 1), vr(T + 1)))
    E("v_mul_f32 %s, %s, %s" % (vr(vCR), vr(T), vr(a))); E("v_mul_f32 %s, %s, %s" % (vr(vCI), vr(vLI), vr(a)))
    E("v_fma_f32 %s, %s, %s, %s" % (vr(vCR), vr(vLI), vr(b), vr(vCR))); E("v_fma_f32 %s, -%s, %s, %s" % (vr(vCI), vr(T), vr(b), vr(vCI)))
    E("v_add_f32 %s, %s, %s" % (vr(T + 1), vr(T + 1), vr(T + 1)))
    E("v_mul_f32 %s, %s, %s" % (vr(vCR), vr(vCR), vr(T + 1))); E("v_mul_f32 %s, %s, %s" % (vr(vCI), vr(vCI), vr(T + 1)))
    cmul(T, T + 1, vLR, vLI, vLR, vLI); cmul(T + 2, T + 3, T, T + 1, T, T + 1); cmul(T, T + 1, T + 2, T + 3, T + 2, T + 3)
    cmul(vL16R, vL16I, T, T + 1, T, T + 1)
    cmul(T, T + 1, vL16R, vL16I, vL16R, vL16I); cmul(T + 2, T + 3, T, T + 1, T, T + 1); cmul(vL128R, vL128I, T + 2, T + 3, T + 2, T + 3)
    stamp(1)
    main_loop(True)
    if OPT["PRIO"] > 1: E("s_setprio 2")
    stamp(2)
    gelu_setup()
    E("v_mov_b32 v%d, %d" % (T + 11, NLO)); E("ds_read_b32 v%d, v%d" % (T + 11, T + 11))
    C("pass 1: end state of this lane's 16 steps")
    H = [T, T + 2]
    cfma(H[1], H[1] + 1, vLR, vLI, ASR, ASI, ASR + 1, ASI + 1)
    for j in range(2, 16):
        cfma(H[j & 1], H[j & 1] + 1, vLR, vLI, H[(j - 1) & 1], H[(j - 1) & 1] + 1, ASR + j, ASI + j)
    E("v_and_b32 %s, 31, %s" % (vr(T + 4), vr(vL))); E("v_lshlrev_b32 %s, 3, %s" % (vr(T + 4), vr(T + 4)))
    E("s_lshl_b32 s71, s%d, 9" % sTA); E("s_add_u32 s71, s71, %d" % EXO)
    E("v_lshl_add_u32 %s, %s, 3, s71" % (vr(T + 5), vr(vL)))
    E("ds_write_b64 %s, %s" % (vr(T + 5), vr(H[1], 2)))
    E("v_add_u32 %s, %d, %s" % (vr(T + 5), EXO, vr(T + 4)))
    E("s_waitcnt lgkmcnt(0)"); E("s_barrier")
    for s in range(8): E("ds_read_b64 %s, %s offset:%d" % (vr(vEE + 2 * s, 2), vr(T + 5), s * 256))
    E("s_lshl_b32 s78, s%d, 13" % sCG); E("s_add_u32 s78, s78, %d" % E0); E("s_add_u32 s79, s78, 4096")
    E("v_mov_b32 %s, %s" % (vr(T + 10), vr(T + 4))); E("v_lshlrev_b32 %s, 1, %s" % (vr(T + 12), vr(T + 4)))
    E("v_readfirstlane_b32 s38, v%d" % (T + 11))
    E("s_cmp_lg_u32 s%d, 0" % sW); E("s_cbranch_scc1 K1_NOPUB")
    E("s_waitcnt lgkmcnt(0)")
    cfma(H[1], H[1] + 1, vL16R, vL16I, vEE, vEE + 1, vEE + 2, vEE + 3)
    for s in range(2, 8):
        cfma(H[s & 1], H[s & 1] + 1, vL16R, vL16I, H[(s - 1) & 1], H[(s - 1) & 1] + 1, vEE + 2 * s, vEE + 2 * s + 1)
    E("s_lshl_b32 s71, s%d, 9" % sRT); E("s_add_u32 s71, s71, s78")
    E("v_mov_b32 %s, %s" % (vr(T + 4), vr(H[1]))); E("v_mov_b32 %s, s38" % vr(T + 5)); E("v_mov_b32 %s, %s" % (vr(T + 6), vr(H[1] + 1))); E("v_mov_b32 %s, s38" % vr(T + 7))
    E("buffer_store_dwordx4 %s, %s, %s, s71 offen sc1" % (vr(T + 4, 4), vr(T + 12), sr(S_WS, 4)))
    L("K1_NOPUB")
    C("gate values for this lane's 16 steps -> v2..v17")
    E("v_lshrrev_b32 v18, 5, v%d" % vL); E("v_lshlrev_b32 v18, 6, v18"); E("s_lshl_b32 s71, s%d, 2" % sRT); E("s_add_u32 s71, s71, s%d" % sTA)
    E("s_lshl_b32 s71, s71, 7"); E("s_add_u32 s71, s71, %d" % G0)
    for q in range(4): E("buffer_load_dwordx4 %s, v18, %s, s71 offen offset:%d sc1" % (vr(2 + 4 * q, 4), sr(S_WS, 4), 16 * q))
    stamp(3)
    gelu_calc(0); gelu_calc(1)
    stamp(4)
    C("look-back")
    RC = [64 + 4 * c if c < 8 else 128 + 4 * (c - 8) for c in range(15)]
    E("s_mov_b32 s81, 0")
    L("K1_LBP")
    for c in range(15):
        E("s_cmp_le_u32 s%d, %d" % (sRT, c)); E("s_cbranch_scc1 K1_LBL")
        E("buffer_load_dwordx4 %s, %s, %s, s%d offen offset:%d sc1" % (vr(RC[c], 4), vr(T + 12), sr(S_WS, 4), 78 + c // 8, (c % 8) * 512))
    L("K1_LBL")
    E("v_mov_b32 %s, 0" % vr(T + 6)); E("s_waitcnt vmcnt(0)")
    for c in range(15):
        E("s_cmp_le_u32 s%d, %d" % (sRT, c)); E("s_cbranch_scc1 K1_LBC")
        E("v_xor_b32 %s, s38, %s" % (vr(T + 7), vr(RC[c] + 1))); E("v_xor_b32 %s, s38, %s" % (vr(T), vr(RC[c] + 3)))
        E("v_or3_b32 %s, %s, %s, %s" % (vr(T + 6), vr(T + 6), vr(T + 7), vr(T)))
    L("K1_LBC")
    E("v_cmp_ne_u32 vcc, 0, %s" % vr(T + 6)); E("s_nop 4"); E("s_or_b32 s71, vcc_lo, vcc_hi"); E("s_cbranch_scc0 K1_LBK")
    E("s_add_u32 s81, s81, 1"); E("s_cmp_gt_u32 s81, 0x10000"); E("s_cbranch_scc1 K1_LBK")
    E("s_sleep 1"); E("s_branch K1_LBP")
    L("K1_LBK")
    stamp(9)
    gelu_st(0); gelu_st(1)
    E("v_mov_b32 %s, 0" % vr(T)); E("v_mov_b32 %s, 0" % vr(T + 1))
    E("v_lshrrev_b32 %s, 5, %s" % (vr(T + 6), vr(vL))); E("s_lshl_b32 s71, s%d, 1" % sTA); E("v_add_u32 %s, s71, %s" % (vr(T + 6), vr(T + 6)))
    E("s_waitcnt lgkmcnt(0)")
    E("s_cmp_eq_u32 s%d, 0" % sRT); E("s_cbranch_scc1 K1_LBD")
    for c in range(1, 15):
        E("s_cmp_le_u32 s%d, %d" % (sRT, c)); E("s_cbranch_scc1 K1_LX%d" % c)
        cfma(RC[c], RC[c] + 2, vL128R, vL128I, RC[c - 1], RC[c - 1] + 2, RC[c], RC[c] + 2)
    E("v_mov_b32 %s, %s" % (vr(T), vr(RC[14]))); E("v_mov_b32 %s, %s" % (vr(T + 1), vr(RC[14] + 2)))
    L("K1_LBD")
    for s in range(7):
        E("v_cmp_lt_u32 vcc, %d, %s" % (s, vr(T + 6)))
        cfma(T + 2, T + 3, vL16R, vL16I, T, T + 1, vEE + 2 * s, vEE + 2 * s + 1)
        E("v_cndmask_b32 %s, %s, %s, vcc" % (vr(T), vr(T), vr(T + 2))); E("v_cndmask_b32 %s, %s, %s, vcc" % (vr(T + 1), vr(T + 1), vr(T + 3)))
    C("pass 2")
    if OPT["EARLY"]:
        for i in (13, 14): p2_load('W', i, WSL[i], vP2W)
    for j in range(16):
        hr, hi = (T, T + 1) if j == 0 else (ASR + j - 1, ASI + j - 1)
        cfma(ASR + j, ASI + j, vLR, vLI, hr, hi, ASR + j, ASI + j)
    OR_, OI = vEC, vEC + 8
    for j in range(0, 16, 2):
        P = lambda b: vr(b, 2)
        E("v_pk_mul_f32 %s, %s, %s op_sel_hi:[0,1]" % (P(T + 4), P(vCR), P(2 + j)))
        E("v_pk_mul_f32 %s, %s, %s op_sel:[1,0]" % (P(T + 6), P(vCR), P(2 + j)))
        E("v_pk_mul_f32 %s, %s, %s" % (P(T), P(T + 4), P(ASR + j))); E("v_pk_mul_f32 %s, %s, %s" % (P(T + 2), P(T + 4), P(ASI + j)))
        E("v_pk_fma_f32 %s, %s, %s, %s neg_lo:[1,0,0] neg_hi:[1,0,0]" % (P(T), P(T + 6), P(ASI + j), P(T)))
        E("v_pk_fma_f32 %s, %s, %s, %s neg_lo:[1,0,1] neg_hi:[1,0,1]" % (P(T + 2), P(T + 6), P(ASR + j), P(T + 2)))
        E("v_cvt_pk_bf16_f32 %s, %s, %s" % (vr(OR_ + j // 2), vr(T), vr(T + 1)))
        E("v_cvt_pk_bf16_f32 %s, %s, %s" % (vr(OI + j // 2), vr(T + 2), vr(T + 3)))
    C("transpose through LDS: rows k (re p, im p) of 64 B (32 t)")
    E("s_lshl_b32 s71, s%d, 12" % sW); E("s_add_u32 s71, s71, %d" % TRO)
    E("v_lshrrev_b32 %s, 5, %s" % (vr(T), vr(vL))); E("v_lshlrev_b32 %s, 5, %s" % (vr(T + 1), vr(T)))
    E("v_lshl_add_u32 %s, %s, 3, %s" % (vr(T + 1), vr(T + 10), vr(T + 1))); E("v_add_u32 %s, s71, %s" % (vr(T + 1), vr(T + 1)))
    E("ds_write_b128 %s, %s" % (vr(T + 1), vr(OR_, 4))); E("ds_write_b128 %s, %s offset:16" % (vr(T + 1), vr(OR_ + 4, 4)))
    E("ds_write_b128 %s, %s offset:2048" % (vr(T + 1), vr(OI, 4))); E("ds_write_b128 %s, %s offset:2064" % (vr(T + 1), vr(OI + 4, 4)))
    E("v_bfe_u32 %s, %s, 2, 2" % (vr(T + 2), vr(vL))); E("v_lshl_add_u32 %s, %s, 3, %s" % (vr(T + 2), vr(T), vr(T + 2)))
    E("v_lshlrev_b32 %s, 6, %s" % (vr(T + 2), vr(T + 2)))
    E("v_and_b32 %s, 1, %s" % (vr(T + 3), vr(vL))); E("v_lshl_add_u32 %s, %s, 5, %s" % (vr(T + 2), vr(T + 3), vr(T + 2)))
    E("v_bfe_u32 %s, %s, 4, 1" % (vr(T + 3), vr(vL))); E("v_lshl_add_u32 %s, %s, 4, %s" % (vr(T + 2), vr(T + 3), vr(T + 2)))
    E("v_bfe_u32 %s, %s, 1, 1" % (vr(T + 3), vr(vL))); E("v_lshl_add_u32 %s, %s, 3, %s" % (vr(T + 2), vr(T + 3), vr(T + 2)))
    E("v_add_u32 %s, s71, %s" % (vr(T + 2), vr(T + 2)))
    E("s_waitcnt lgkmcnt(0)")
    if OPT["EARLY"]: p2_load('W', 12, WSL[12], vP2W)
    for q in range(4):
        E("ds_read_b64_tr_b16 %s, %s offset:%d" % (vr(ASR + 4 * q, 2), vr(T + 2), q * 1024))
        E("ds_read_b64_tr_b16 %s, %s offset:%d" % (vr(ASR + 4 * q + 2, 2), vr(T + 2), q * 1024 + 256))
    for q in range(4):
        E("s_waitcnt lgkmcnt(%d)" % (6 - 2 * q))
        E("buffer_store_dwordx4 %s, %s, %s, s76 offen offset:%d%s" % (vr(ASR + 4 * q, 4), vr(vT + 9), sr(S_WS, 4), q * 1024, SC))
    stamp(13)
    if OPT["PRIO"] > 1: E("s_setprio 0")
    E("s_branch K1_JOIN")
    spins()
    for c in range(1, 15):
        L("K1_LX%d" % c); E("v_mov_b32 %s, %s" % (vr(T), vr(RC[c - 1]))); E("v_mov_b32 %s, %s" % (vr(T + 1), vr(RC[c - 1] + 2))); E("s_branch K1_LBD")
    L("K1_PLAIN")
    stamp(1)
    pc = main_loop(False)
    stamp(2)
    gelu_setup()
    for i in range(12, 15): p2_load('W', i, WSL[i], vP2W)
    E("s_waitcnt vmcnt(%d)" % (pc + 6)); w4_check("v_cmp_eq_u32 vcc, s38, v47", "G")
    E("s_barrier")
    stamp(3)
    ex = [(i, j, vP2W, o) for i in range(15, 21) for j in range(2) for o in range(2)] if OPT["PACE"] else None
    gelu_calc(0, ex); gelu_st(0); gelu_calc(1, ex); gelu_st(1)
    stamp(4)
    L("K1_JOIN")
    E("s_waitcnt vmcnt(0)"); stamp(14); E("s_barrier")
    stamp(5)
    E("v_mov_b32 v2, v%d" % vP2W)
    E("s_cmp_lg_u32 s%d, 4" % sW); E("s_cbranch_scc1 K1_NOPOLL")
    if OPT["PRIO"]: E("s_setprio 3")
    E("s_lshl_b32 s80, s%d, 7" % sRT); E("s_add_u32 s80, s80, %d" % (FL0 + 2048)); E("s_lshl_b32 s71, s%d, 2" % sCG)
    E("v_mov_b32 v3, s71"); E("v_mov_b32 v4, s38")
    E("buffer_store_dword v4, v3, %s, s80 offen sc1" % sr(S_WS, 4))
    E("v_and_b32 v5, 15, v%d" % vL); E("v_lshlrev_b32 v5, 2, v5")
    poll("buffer_load_dword v6, v5, %s, s80 offen sc1" % sr(S_WS, 4), "v_cmp_eq_u32 vcc, s38, v6", "0x3fff")
    stamp(15)
    if OPT["PRIO"]: E("s_setprio 0")
    L("K1_NOPOLL")
    E("s_cmp_ge_u32 s%d, 4" % sW); E("s_cbranch_scc1 K1_NOW")
    for i in range(8, 12 if OPT["EARLY"] else 15): p2_load('W', i, WSL[i], 2)
    L("K1_NOW")
    if not OPT["PACE"]:
        for i in range(15, 21):
            for j in range(2): lds_w(i, j, 2, 0)
    p2_main()
    L("K1_PREP")
    E("s_sub_u32 s70, s2, 224"); E("s_lshl_b32 s65, s%d, 5" % sW); E("s_add_u32 s65, s65, s70")
    E("s_lshl_b32 s70, s70, 3"); E("s_add_u32 s70, s70, s%d" % sW)
    srd(S_T, P_GW, 896)
    E("v_lshrrev_b32 v2, 3, v1"); E("s_lshl_b32 s71, s70, 3"); E("v_add_u32 v2, s71, v2")
    E("v_and_b32 v3, 7, v1"); E("v_lshlrev_b32 v3, 4, v3"); E("v_mul_u32_u24 v4, 896, v2"); E("v_add_u32 v4, v4, v3")
    E("v_lshlrev_b32 v5, 4, v1"); E("v_and_b32 v122, 7, v1"); E("v_lshlrev_b32 v122, 7, v122"); E("s_mov_b32 s38, %d" % FL0)
    E("s_cmp_ge_u32 s65, 224"); E("s_cbranch_scc1 K1_PN")
    E("s_cmp_ge_u32 s65, 112"); E("s_cbranch_scc1 K1_PC")
    C("W_down k-step s65 -> fragments")
    srd(S_W, P_WD, WN)
    E("s_mul_i32 s71, s65, 14336"); E("s_mul_i32 s72, s%d, 14336" % sW)
    for i in range(14):
        E("s_add_u32 m0, s72, %d" % (i * 1024)); E("s_add_u32 s73, s71, %d" % (i * 1024))
        E("buffer_load_dwordx4 v5, %s, s73 offen lds" % sr(S_W, 4))
    E("v_lshrrev_b32 v6, 5, v1"); E("v_bfe_u32 v7, v1, 2, 2"); E("v_lshl_add_u32 v6, v6, 2, v7"); E("v_mul_u32_u24 v6, 896, v6")
    E("v_bfe_u32 v7, v1, 4, 1"); E("v_lshl_add_u32 v6, v7, 5, v6"); E("v_and_b32 v7, 3, v1"); E("v_lshl_add_u32 v6, v7, 3, v6")
    E("v_add_u32 v6, s72, v6"); E("s_lshl_b32 s71, s65, 10"); E("s_add_u32 s71, s71, %d" % WB0)
    E("s_waitcnt vmcnt(0)")
    for nb in range(14):
        E("ds_read_b64_tr_b16 %s, v6 offset:%d" % (vr(64 + 4 * nb, 2), nb * 64))
        E("ds_read_b64_tr_b16 %s, v6 offset:%d" % (vr(66 + 4 * nb, 2), nb * 64 + 8 * 896))
    E("s_waitcnt lgkmcnt(0)")
    for nb in range(14):
        E("buffer_store_dwordx4 %s, v5, %s, s71 offen sc1" % (vr(64 + 4 * nb, 4), sr(S_WS, 4))); E("s_add_u32 s71, s71, %d" % (NKS * 1024))
    E("s_branch K1_PG")
    L("K1_PC")
    E("s_sub_u32 s66, s65, 112"); E("s_lshr_b32 s67, s66, 3"); E("s_bfe_u32 s68, s66, 0x10002"); E("s_and_b32 s69, s66, 3")
    E("s_cmp_eq_u32 s68, 0")
    E("s_cselect_b32 s%d, s%d, s%d" % (S_B, P_CRE, P_CIM)); E("s_cselect_b32 s%d, s%d, s%d" % (S_B + 1, P_CRE + 1, P_CIM + 1))
    E("s_and_b32 s%d, s%d, 0xffff" % (S_B + 1, S_B + 1)); E("s_mov_b32 s%d, %d" % (S_B + 2, BN)); E("s_mov_b32 s%d, 0x20000" % (S_B + 3))
    E("v_and_b32 v6, 31, v1"); E("s_lshl_b32 s71, s67, 5"); E("v_add_u32 v6, s71, v6"); E("v_mul_u32_u24 v6, 896, v6")
    E("v_lshrrev_b32 v7, 5, v1"); E("v_lshl_add_u32 v6, v7, 4, v6")
    E("s_mul_i32 s69, s69, 7"); E("s_lshl_b32 s71, s69, 5")
    for i in range(7): E("buffer_load_dwordx4 %s, v6, %s, s71 offen offset:%d" % (vr(64 + 4 * i, 4), sr(S_B, 4), i * 32))
    E("s_mul_i32 s72, s67, %d" % NKS); E("s_lshl_b32 s68, s68, 1"); E("s_add_u32 s72, s72, s68"); E("s_add_u32 s72, s72, %d" % (112 + WB0 // 1024))
    E("s_waitcnt vmcnt(0)")
    for i in range(7):
        E("s_add_u32 s73, s69, %d" % i); E("s_lshr_b32 s74, s73, 1"); E("s_lshl_b32 s74, s74, 2"); E("s_and_b32 s73, s73, 1")
        E("s_add_u32 s73, s73, s74"); E("s_add_u32 s73, s73, s72"); E("s_lshl_b32 s73, s73, 10")
        E("buffer_store_dwordx4 %s, v5, %s, s73 offen sc1" % (vr(64 + 4 * i, 4), sr(S_WS, 4)))
    E("s_branch K1_PG")
    L("K1_PN")
    srd(S_DBG, P_DBG, 256); E("v_mov_b32 v44, 0"); E("s_mov_b32 s71, %d" % FL0)
    E("s_cmp_lg_u32 s2, 224"); E("s_cbranch_scc1 K1_PN1")
    E("buffer_load_dword v42, v44, %s, s71 offen sc1" % sr(S_WS, 4)); E("v_and_b32 v44, 1, v1"); E("v_lshlrev_b32 v44, 7, v44"); E("v_mov_b32 v43, 1")
    E("s_waitcnt vmcnt(0)"); E("v_add_u32 v42, 0x9e3779b9, v42"); E("buffer_store_dwordx2 v[42:43], v44, %s, 0 offen sc1" % sr(S_DBG, 4))
    E("s_branch K1_PN2")
    L("K1_PN1")
    poll(LD_N, "v_cmp_eq_u32 vcc, 1, v43", "-1")
    L("K1_PN2")
    E("v_mov_b32 v123, v42")
    E("s_sub_u32 s38, s2, 224"); E("s_lshl_b32 s38, s38, 2"); E("s_add_u32 s38, s38, %d" % FL0)
    L("K1_PG")
    for i in range(7):
        E("buffer_load_dwordx4 %s, v4, %s, 0 offen offset:%d" % (vr(8 + 4 * i, 4), sr(S_X, 4), i * 128))
        E("buffer_load_dwordx4 %s, v3, %s, 0 offen offset:%d" % (vr(36 + 4 * i, 4), sr(S_T, 4), i * 128))
    E("s_waitcnt vmcnt(14)"); E("s_barrier")
    stamp(4)
    E("s_cmp_lg_u32 s%d, 7" % sW); E("s_cbranch_scc1 K1_PF")
    E("buffer_store_dword v123, v122, %s, s38 offen sc1" % sr(S_WS, 4))
    L("K1_PF")
    E("s_waitcnt vmcnt(0)")
    E("v_mov_b32 v6, 0"); E("v_mov_b32 v7, 0"); E("s_mov_b32 s71, 0xffff0000")
    for i in range(28):
        x, w = 8 + i, 36 + i
        E("v_lshlrev_b32 v124, 16, v%d" % x); E("v_and_b32 v125, s71, v%d" % x); E("v_lshlrev_b32 v126, 16, v%d" % w); E("v_and_b32 v127, s71, v%d" % w)
        E("v_mul_f32 v124, v124, v126"); E("v_mul_f32 v125, v125, v127"); E("v_cvt_pk_bf16_f32 v124, v124, v125")
        E("v_lshlrev_b32 v125, 16, v124"); E("v_and_b32 v124, s71, v124"); E("v_add_f32 v6, v6, v125"); E("v_add_f32 v7, v7, v124")
    E("v_add_f32 v6, v6, v7")
    for o in ("0x041F", "0x081F", "0x101F"):
        E("ds_swizzle_b32 v7, v6 offset:%s" % o); E("s_waitcnt lgkmcnt(0)"); E("v_add_f32 v6, v6, v7")
    E("v_cvt_pk_bf16_f32 v6, v6, v6"); E("v_lshlrev_b32 v6, 16, v6"); E("v_mul_f32 v6, %s, v6" % f2u(-math.log2(math.e)))
    E("v_exp_f32 v6, v6"); E("s_nop 0"); E("v_add_f32 v6, 1.0, v6"); E("v_rcp_f32 v6, v6"); E("s_nop 0")
    E("v_cvt_pk_bf16_f32 v6, v6, v6"); E("v_lshlrev_b32 v6, 16, v6"); E("v_lshlrev_b32 v2, 2, v2"); E("s_mov_b32 s71, %d" % G0)
    E("buffer_store_dword v6, v2, %s, s71 offen sc1" % sr(S_WS, 4))
    E("s_waitcnt vmcnt(0)"); E("s_barrier")
    E("s_cmp_lg_u32 s%d, 7" % sW); E("s_cbranch_scc1 K1_PE")
    E("buffer_store_dword v123, v122, %s, s38 offen offset:1024 sc1" % sr(S_WS, 4))
    L("K1_PE")
    stamp(5); dump_stamps(1 << 25)
    L("K1_END")
    E("s_endpgm")

def p2_main():
    C("phase 2")
    srd(S_T, P_D, 896); srd(S_B, P_OUT, 2048 * 448 * 4)
    E("v_and_b32 v4, 31, v1"); perm(5, 4, 6); E("s_lshl_b32 s73, s94, 6"); E("v_add_lshl_u32 v5, v5, s73, 2"); E("s_mov_b32 s74, %d" % G0)
    E("buffer_load_dword v8, v5, %s, s74 offen sc1" % sr(S_WS, 4)); E("buffer_load_dword v9, v5, %s, s74 offen offset:128 sc1" % sr(S_WS, 4))
    E("v_lshrrev_b32 v4, 4, v1"); E("v_and_b32 v6, 15, v1"); E("s_lshl_b32 s75, s95, 7"); E("v_lshl_add_u32 v7, v6, 3, s75")
    E("buffer_load_dwordx2 v[10:11], v7, %s, 0 offen" % sr(S_T, 4))
    E("s_and_b32 s75, s%d, 3" % sW); E("s_lshl_b32 s75, s75, 2"); E("s_lshr_b32 s76, s%d, 2" % sW); E("s_lshl_b32 s76, s76, 5")
    E("s_add_u32 s75, s75, s76"); E("s_add_u32 s75, s75, s73"); E("v_add_u32 v3, s75, v4")
    E("v_lshlrev_b32 v4, 2, v3"); E("v_mul_u32_u24 v3, 896, v3"); E("v_add_u32 v3, v3, v7"); E("s_movk_i32 s77, %d" % (16 * 896))
    E("buffer_load_dwordx2 v[12:13], v3, %s, 0 offen" % sr(S_X, 4)); E("buffer_load_dwordx2 v[14:15], v3, %s, s77 offen" % sr(S_X, 4))
    E("buffer_load_dword v6, v4, %s, s74 offen sc1" % sr(S_WS, 4)); E("buffer_load_dword v7, v4, %s, s74 offen offset:64 sc1" % sr(S_WS, 4))
    E("s_barrier")
    stamp(6)
    wreg = {i: WSL[i] for i in range(15)}; hreg = {}; order = []
    for i, R in enumerate(HSL): p2_load('H', i, R, 2); hreg[i] = R; order.append(i)
    nh = len(HSL)
    E("s_lshl_b32 s75, s%d, 14" % sW); E("v_add_u32 v5, s75, v2")
    for i in range(21):
        E("s_waitcnt vmcnt(%d)" % (2 * (len(order) - 1 - i)))
        if i == 14:
            E("v_sub_f32 v4, 1.0, v8"); E("v_sub_f32 v5, 1.0, v9"); E("v_cvt_pk_bf16_f32 v4, v4, v5")
            E("v_and_b32 v5, 0xffff0000, v4"); E("v_lshlrev_b32 v4, 16, v4"); E("s_nop 7")
            for k in range(4):
                for r in range(0, 16, 2): E("v_pk_mul_f32 %s, v[4:5], %s %s" % (vr(ACC2 + 16 * k + r, 2), vr(ACC2 + 16 * k + r, 2), "op_sel:[1,0]" if k & 1 else "op_sel_hi:[0,1]"))
            E("s_waitcnt lgkmcnt(0)"); E("s_nop 0")
        for k in range(4):
            A = ACC2 + 16 * k
            E("v_mfma_f32_32x32x16_bf16 %s, %s, %s, %s" % (vr(A, 16), vr(wreg[i] + 4 * (k >> 1), 4), vr(hreg[i] + 4 * (k & 1), 4), vr(A, 16) if i else "0"))
        for R in (hreg[i], wreg[i]):
            if nh < 21: p2_load('H', nh, R, 2); hreg[nh] = R; order.append(nh); nh += 1
        if 8 <= i < 14:
            R = wreg[i - 1]; wreg[i + 7] = R
            for j in range(2): E("ds_read_b128 %s, v5 offset:%d" % (vr(R + 4 * j, 4), (i - 8) * 2048 + j * 1024))
    stamp(7)
    C("partials -> LDS [wave][row 64][256B], chunk ^= row&7")
    E("v_and_b32 v16, 31, v1"); E("v_lshrrev_b32 v17, 5, v1"); E("v_and_b32 v18, 7, v1"); E("v_xor_b32 v17, v17, v18")
    E("s_lshl_b32 s75, s%d, 14" % sW); E("v_lshl_add_u32 v16, v16, 8, s75")
    for q in range(4):
        E("v_xor_b32 v18, %d, v17" % (2 * q)); E("v_lshl_add_u32 v%d, v18, 4, v16" % (20 + q))
    for k in range(4):
        for q in range(4): E("ds_write_b128 v%d, %s offset:%d" % (20 + q, vr(ACC2 + 16 * k + 4 * q, 4), (k & 1) * 8192 + (k >> 1) * 128))
    E("v_lshrrev_b32 v16, 4, v1"); E("s_lshl_b32 s75, s%d, 3" % sW); E("v_add_u32 v16, s75, v16"); E("v_and_b32 v18, 15, v1")
    for i in range(2):
        E("v_add_u32 v17, %d, v16" % (4 * i)); E("v_and_b32 v19, 7, v17"); E("v_xor_b32 v19, v19, v18"); E("v_lshlrev_b32 v19, 4, v19")
        E("v_lshl_add_u32 v%d, v17, 8, v19" % (24 + i)); E("v_add_u32 v%d, 65536, v%d" % (26 + i, 24 + i))
    E("v_lshlrev_b32 v3, 1, v3")
    E("v_lshlrev_b32 v16, 16, v10"); E("v_and_b32 v17, 0xffff0000, v10"); E("v_lshlrev_b32 v18, 16, v11"); E("v_and_b32 v19, 0xffff0000, v11")
    for i in range(2):
        x0, x1, S = 12 + 2 * i, 13 + 2 * i, 28 + 4 * i
        E("v_lshlrev_b32 v%d, 16, v%d" % (S, x0)); E("v_and_b32 v%d, 0xffff0000, v%d" % (S + 1, x0))
        E("v_lshlrev_b32 v%d, 16, v%d" % (S + 2, x1)); E("v_and_b32 v%d, 0xffff0000, v%d" % (S + 3, x1))
        for r in range(4): E("v_mul_f32 v%d, v%d, v%d" % (S + r, S + r, 16 + r))
        E("v_cvt_pk_bf16_f32 v%d, v%d, v%d" % (x0, S, S + 1)); E("v_cvt_pk_bf16_f32 v%d, v%d, v%d" % (x1, S + 2, S + 3))
        E("v_lshlrev_b32 v%d, 16, v%d" % (S, x0)); E("v_and_b32 v%d, 0xffff0000, v%d" % (S + 1, x0))
        E("v_lshlrev_b32 v%d, 16, v%d" % (S + 2, x1)); E("v_and_b32 v%d, 0xffff0000, v%d" % (S + 3, x1))
        for r in range(4): E("v_mul_f32 v%d, v%d, v%d" % (S + r, S + r, 6 + i))
    def red(sws, fin):
        n = len(sws)
        for i in range(2):
            for sw in sws: E("ds_read_b128 %s, v%d offset:%d" % (vr(48 + 32 * i + 4 * sw, 4), (24 if sw < 4 else 26) + i, (sw & 3) * 16384))
        for i in range(2):
            B, S = 48 + 32 * i, 28 + 4 * i
            for q, sw in enumerate(sws):
                if q % 2 == 0: E("s_waitcnt lgkmcnt(%d)" % (2 * n - 2 - n * i - q))
                for r in (0, 2): E("v_pk_add_f32 %s, %s, %s" % (vr(S + r, 2), vr(S + r, 2), vr(B + 4 * sw + r, 2)))
            if fin:
                E("s_mov_b32 s77, %d" % (i * 16 * 1792))
                E("buffer_store_dwordx4 %s, v3, %s, s77 offen" % (vr(S, 4), sr(S_B, 4)))
    E("s_waitcnt lgkmcnt(0)")
    if OPT["PRE"]:
        E("s_cmp_ge_u32 s%d, 4" % sW); E("s_cbranch_scc1 K1_RALL")
        E("v_mov_b32 v16, %d" % NLO); E("v_mov_b32 v17, 1"); E("ds_add_u32 v16, v17 offset:4"); E("s_mov_b32 s81, 0")
        L("K1_RSP")
        E("ds_read_b32 v17, v16 offset:4"); E("s_waitcnt lgkmcnt(0)"); E("v_readfirstlane_b32 s71, v17")
        E("s_add_u32 s81, s81, 1"); E("s_cmp_gt_u32 s81, 0x40000"); E("s_cbranch_scc1 K1_RSD")
        E("s_cmp_eq_u32 s71, 256"); E("s_cbranch_scc1 K1_RSD"); E("s_sleep 2"); E("s_branch K1_RSP")
        L("K1_RSD")
        red(range(4), False)
        E("s_barrier")
        red(range(4, 8), True)
        E("s_branch K1_RE")
        L("K1_RALL")
    E("s_barrier")
    red(range(8), True)
    L("K1_RE")
    stamp(8); dump_stamps(1 << 25)
    E("s_endpgm")

def desc(name, vg, acc):
    return [".p2align 6", ".amdhsa_kernel %s" % name, "  .amdhsa_next_free_vgpr %d" % vg, "  .amdhsa_next_free_sgpr 96",
            "  .amdhsa_accum_offset %d" % acc, "  .amdhsa_group_segment_fixed_size 0", "  .amdhsa_kernarg_size 136",
            "  .amdhsa_user_sgpr_count 2", "  .amdhsa_user_sgpr_kernarg_segment_ptr 1", "  .amdhsa_system_sgpr_workgroup_id_x 1",
            ".end_amdhsa_kernel"]
hdr = [l.rstrip("\n") for l in open("cdna_kernels/%s.s.ref" % NAME) if l.startswith(";   offset") or l.startswith("; Kernarg")]
KN = NAME + "_kernel"
hdr += ["; @launch grid=(256,1,1) block=(512,1,1) lds=163840", '.amdgcn_target "amdgcn-amd-amdhsa--gfx950"', ".text"]
k1()
body = [".globl %s" % KN, ".p2align 8", ".type %s,@function" % KN] + list(out)
tail = ['.section .rodata,"a"'] + desc(KN, 256, 256)
open(sys.argv[1], "w").write("\n".join(hdr + body + tail) + "\n")
```

```python
import sys, struct, math
NAME = "gated_mix__ssm_conv_s5__glu_gated_geglu__prompt"
OPT = dict(LATEW=0, PRIO=2, PRE=1, ROT=1, PACE=1, EARLY=1, NS=14, M16=0, TWICE=0, NOMMA=0, NODMA=0, NOLDS=0, D2=8, MAP1="4x7", STAMP=0)
for a in sys.argv[2:]:
    k, v = a.split("="); OPT[k] = int(v) if v.lstrip("-").isdigit() else v
out = []
def E(s): out.append("    " + s)
def L(s): out.append(s + ":")
def C(s): out.append("    ; " + s)
def f2u(x): return "0x%08x" % struct.unpack("<I", struct.pack("<f", x))[0]
def vr(b, n=1): return "v%d" % b if n == 1 else "v[%d:%d]" % (b, b + n - 1)
def ar(b, n=1): return "a%d" % b if n == 1 else "a[%d:%d]" % (b, b + n - 1)
def sr(b, n=1): return "s%d" % b if n == 1 else "s[%d:%d]" % (b, b + n - 1)
def srd(d, p, nbytes):
    E("s_mov_b32 s%d, s%d" % (d, p)); E("s_and_b32 s%d, s%d, 0xffff" % (d + 1, p + 1))
    E("s_mov_b32 s%d, %d" % (d + 2, nbytes)); E("s_mov_b32 s%d, 0x20000" % (d + 3))
NKS = 168
HA0 = 0; HA_SZ = 64 * NKS * 1024
WB0 = HA_SZ; WB_SZ = 14 * NKS * 1024
G0 = WB0 + WB_SZ; E0 = G0 + 8192; FL0 = E0 + 14 * 16 * 512; WS_SZ = FL0 + 4096; NLO = 157696
XN = 2048 * 448 * 2; BN = 448 * 448 * 2; WN = 448 * 1792 * 2
P_X, P_LRE, P_LIM, P_BRE, P_BIM, P_CRE, P_CIM, P_LDT = 4, 6, 8, 10, 12, 14, 16, 18
P_D, P_BX, P_WG, P_WU, P_WD, P_GW, P_OUT, P_DBG, P_WS = 20, 22, 24, 26, 28, 30, 32, 34, 36
def load_args():
    E("s_load_dwordx16 s[4:19], s[0:1], 0"); E("s_load_dwordx16 s[20:35], s[0:1], 64")
    E("s_load_dwordx2 s[36:37], s[0:1], 128")
def perm(dst, r, t1):
    E("v_and_b32 %s, 3, %s" % (vr(dst), vr(r)))
    E("v_lshrrev_b32 %s, 3, %s" % (vr(t1), vr(r)))
    E("v_lshl_add_u32 %s, %s, 2, %s" % (vr(dst), vr(t1), vr(dst)))
    E("v_bfe_u32 %s, %s, 2, 1" % (vr(t1), vr(r)))
    E("v_lshl_add_u32 %s, %s, 4, %s" % (vr(dst), vr(t1), vr(dst)))
def cmul(dr, di, ar_, ai, br, bi):
    E("v_mul_f32 %s, %s, %s" % (vr(dr), vr(ar_), vr(br))); E("v_mul_f32 %s, %s, %s" % (vr(di), vr(ar_), vr(bi)))
    E("v_fma_f32 %s, -%s, %s, %s" % (vr(dr), vr(ai), vr(bi), vr(dr))); E("v_fma_f32 %s, %s, %s, %s" % (vr(di), vr(ai), vr(br), vr(di)))
def cfma(dr, di, lr, li, hr, hi, ur, ui):
    E("v_fma_f32 %s, %s, %s, %s" % (vr(dr), vr(lr), vr(hr), vr(ur))); E("v_fma_f32 %s, %s, %s, %s" % (vr(di), vr(lr), vr(hi), vr(ui)))
    E("v_fma_f32 %s, -%s, %s, %s" % (vr(dr), vr(li), vr(hi), vr(dr))); E("v_fma_f32 %s, %s, %s, %s" % (vr(di), vr(li), vr(hr), vr(di)))
def stamp(slot):
    if OPT["STAMP"]:
        E("s_memrealtime s[90:91]"); E("s_waitcnt lgkmcnt(0)"); E("v_writelane_b32 v0, s90, %d" % slot)
        if slot in (1, 2): E("s_memtime s[90:91]"); E("s_waitcnt lgkmcnt(0)"); E("v_writelane_b32 v0, s90, %d" % (slot + 10))

S_X, S_B, S_W, S_WS, S_DBG, S_T = 40, 44, 48, 52, 56, 60
sW, sRT, sCG, sTA, sM1, sM2, sM3 = 64, 65, 66, 67, 68, 69, 70
XBS = [0, 24576, 49152]; WS0 = 73728; EXO = 155648; TRO = 131072
vL, vXD0, vXD1, vBD, vWD = 1, 2, 3, 4, 5
vXA, vXB, vBA, vWA0, vWA1 = 6, 10, 14, 18, 19
vLR, vLI, vCR, vCI, vL16R, vL16I, vL128R, vL128I = 20, 21, 22, 23, 24, 25, 26, 27
vT = 28
FR = [48, 72]
AG = [96, 112]; AU = [128, 144]; ASR, ASI = 160, 176
vEE = 48
vEC = 64
def dma_group(j):
    if j > 13 or (OPT["NODMA"] and j > 3): return
    if j % 2 == 0:
        st = j // 2; slot = XBS[st % 3]
        E("s_mov_b32 s71, %d" % (st * 128))
        E("s_add_u32 m0, s%d, %d" % (sM1, slot)); E("s_nop 0")
        E("buffer_load_dwordx4 %s, %s, s71 offen lds" % (vr(vXD0), sr(S_X, 4)))
        E("s_add_u32 m0, s%d, %d" % (sM1, slot + 1024)); E("s_nop 0")
        E("buffer_load_dwordx4 %s, %s, s71 offen lds" % (vr(vXD1), sr(S_X, 4)))
        E("s_add_u32 m0, s%d, %d" % (sM2, slot + 16384)); E("s_nop 0")
        E("buffer_load_dwordx4 %s, %s, s71 offen lds" % (vr(vBD), sr(S_B, 4)))
    for m in range(2):
        E("s_mov_b32 s71, %d" % ((32 * j + 4 * m) * 3584))
        E("s_add_u32 m0, s%d, %d" % (sM1, WS0 + (j % 5) * 16384 + m * 1024)); E("s_nop 0")
        E("buffer_load_dwordx4 %s, %s, s71 offen lds" % (vr(vWD), sr(S_W, 4)))
def dma_part(j, part):
    save = list(out); del out[:]; dma_group(0); g = list(out); out[:] = save
    rng = {0: g[0:4], 1: g[0:1] + g[4:7], 2: g[0:1] + g[7:10], 3: g[10:]}[part]
    out.extend(rng)
def gsize(j): return 0 if j > 13 else (5 if j % 2 == 0 else 2)
def frag_reads(n, ssm):
    F = FR[n & 1]; xs = XBS[(n // 4) % 3]; ks = n % 4; i = n // 2; wsl = i % 5
    wa = vWA0 if wsl < 3 else vWA1; wo = (wsl if wsl < 3 else wsl - 3) * 16384 + (n & 1) * 4096
    r = []
    r.append("ds_read_b64_tr_b16 %s, %s offset:%d" % (vr(F + 8, 2), vr(wa), wo))
    r.append("ds_read_b64_tr_b16 %s, %s offset:%d" % (vr(F + 10, 2), vr(wa), wo + 1024))
    r.append("ds_read_b128 %s, %s offset:%d" % (vr(F, 4), vr(vXA + ks), xs))
    r.append("ds_read_b128 %s, %s offset:%d" % (vr(F + 4, 4), vr(vXB + ks), xs))
    r.append("ds_read_b64_tr_b16 %s, %s offset:%d" % (vr(F + 12, 2), vr(wa), wo + 8192))
    r.append("ds_read_b64_tr_b16 %s, %s offset:%d" % (vr(F + 14, 2), vr(wa), wo + 8192 + 1024))
    if ssm:
        r.append("ds_read_b128 %s, %s offset:%d" % (vr(F + 16, 4), vr(vBA + ks), xs))
        r.append("ds_read_b128 %s, %s offset:%d" % (vr(F + 20, 4), vr(vBA + ks), xs + 4096))
    return r
def mfmas(n, ssm):
    F = FR[n & 1]
    def m(d, a, b): return "v_mfma_f32_32x32x16_bf16 %s, %s, %s, %s" % (vr(d, 16), vr(a, 4), vr(b, 4), vr(d, 16) if n else "0")
    r = [m(AG[0], F + 8, F), m(AG[1], F + 8, F + 4), m(AU[0], F + 12, F), m(AU[1], F + 12, F + 4)]
    if ssm: r += [m(ASR, F, F + 16), m(ASI, F, F + 20)]
    return r
def w4_check(cmp_, tag, post=None):
    E("s_cmp_lg_u32 s%d, 4" % sW); E("s_cbranch_scc1 CKR" + tag)
    E(cmp_); E("s_nop 4"); E("s_cmp_eq_u32 vcc_lo, -1"); E("s_cbranch_scc0 CKS" + tag); L("CKD" + tag)
    if post: post()
    L("CKR" + tag)
def nonce_post():
    E("v_readfirstlane_b32 s38, v42"); E("v_mov_b32 v44, %d" % NLO); E("v_mov_b32 v43, 0"); E("ds_write_b64 v44, v[42:43]")
LD_N = "buffer_load_dwordx2 v[42:43], v44, %s, 0 offen sc1" % sr(S_DBG, 4)
LD_W = "buffer_load_dword v47, v45, %s, 0 offen sc1" % sr(S_WS, 4)
LD_G = "buffer_load_dword v47, v45, %s, 0 offen offset:1024 sc1" % sr(S_WS, 4)
def main_loop(ssm):
    q = []
    for j in range(4): q.extend([j] * gsize(j))
    def cnt(g): return len(q) - 1 - max(k for k, t in enumerate(q) if t == g)
    NS = OPT["NS"]; NC = NS + 6
    wl = [(i, j) for i in range(8 if ssm else 12) for j in range(2)]
    per = -(-len(wl) // (28 - NC))
    E("s_waitcnt vmcnt(%d)" % cnt(0)); E("s_barrier")
    for s in frag_reads(0, ssm): E(s)
    for n in range(28):
        if n % 2 == 0 and n < 26:
            E("s_waitcnt vmcnt(%d) lgkmcnt(0)" % cnt(n // 2 + 1))
            if n == NC and not ssm: w4_check("v_cmp_eq_u32 vcc, s38, v47", "W")
            E("s_barrier")
            if n == 8 and not ssm: w4_check("v_cmp_eq_u32 vcc, 1, v43", "N", nonce_post)
        else:
            E("s_waitcnt lgkmcnt(0)")
        ms = mfmas(n, ssm); rs = frag_reads(n + 1, ssm) if n < 27 else []
        for k, mm in enumerate(ms):
            E(mm)
            for s in rs[2 * k:2 * k + 2]: E(s)
            if k == 3 and not ssm and n in (2, NS, max(22, NC)): E({2: LD_N, NS: LD_W, max(22, NC): LD_G}[n]); q.append('p')
            if k == 3 and n % 2 == 0: dma_group(n // 2 + 4); q.extend([n // 2 + 4] * gsize(n // 2 + 4))
            if k == 3 and n >= NC:
                for (i, j) in wl[:per]: p2_load('W', i, WSL[i], vP2W, j); q.append('w')
                wl = wl[per:]
    assert not wl
    return cnt('p') if not ssm else 0
def spins():
    for tag, ld, c in (("N", LD_N, "v_cmp_eq_u32 vcc, 1, v43"), ("W", LD_W, "v_cmp_eq_u32 vcc, s38, v47"), ("G", LD_G, "v_cmp_eq_u32 vcc, s38, v47")):
        L("CKS" + tag); poll(ld, c, "-1"); E("s_branch CKD" + tag)
SC = " sc1"
def gelu_calc(t, extra=None):
    g, u = AG[t], AU[t]
    for r0 in range(0, 16, 4):
        T = vT
        if extra:
            for _ in range(3): lds_w(*extra.pop(0))
        P = lambda b: vr(b, 2)
        for i in (0, 2): E("v_pk_mul_f32 %s, %s, %s" % (P(T + i), P(g + r0 + i), P(g + r0 + i)))
        for i in (0, 2): E("v_pk_fma_f32 %s, %s, s[72:73], %s op_sel_hi:[1,0,0]" % (P(T + i), P(T + i), P(T + 8)))
        for i in (0, 2): E("v_pk_mul_f32 %s, %s, %s" % (P(T + i), P(T + i), P(g + r0 + i)))
        for i in range(4): E("v_exp_f32 %s, %s" % (vr(T + i), vr(T + i)))
        for i in (0, 2): E("v_pk_mul_f32 %s, %s, %s" % (P(T + 4 + i), P(g + r0 + i), P(u + r0 + i)))
        for i in (0, 2): E("v_pk_add_f32 %s, %s, s[30:31] op_sel_hi:[1,0]" % (P(T + i), P(T + i)))
        for i in range(4): E("v_rcp_f32 %s, %s" % (vr(T + i), vr(T + i)))
        for i in (0, 2): E("v_pk_mul_f32 %s, %s, %s" % (P(T + i), P(T + i), P(T + 4 + i)))
        for i in range(2): E("v_cvt_pk_bf16_f32 %s, %s, %s" % (vr(g + r0 // 2 + i), vr(T + 2 * i), vr(T + 2 * i + 1)))
def gelu_st(t):
    g = AG[t]
    E("buffer_store_dwordx4 %s, %s, %s, s%d offen%s" % (vr(g, 4), vr(vT + 9), sr(S_WS, 4), 73 + t, SC))
    E("buffer_store_dwordx4 %s, %s, %s, s%d offen offset:1024%s" % (vr(g + 4, 4), vr(vT + 9), sr(S_WS, 4), 73 + t, SC))
WSL = [192, 200, 208, 216, 224, 232, 240, 248, 160, 168, 176, 184, 72, 80, 88]
HSL = [16, 24, 32, 40, 48, 56, 64]
ACC2 = 96
vP2W = 46
def p2_ks(i): return i if i < 14 else i - 14
def p2_load(kind, i, R, va, only=None):
    base = (82 if kind == 'W' else 86) + (0 if i < 14 else 2)
    for j in range(2):
        if only is not None and j != only: continue
        E("s_add_u32 s93, s%d, s%d" % (base + j, ROTS[i]))
        E("buffer_load_dwordx4 %s, v%d, %s, s93 offen sc1" % (vr(R + 4 * j, 4), va, sr(S_WS, 4)))
ROTS = list(range(4, 20)) + list(range(22, 27))
def lds_w(i, j, va, other):
    E("s_add_u32 m0, s%d, %d" % (27 + other, (i - 15) * 2048 + j * 1024)); E("s_add_u32 s93, s%d, s%d" % (84 + j, ROTS[i]))
    if other: E("s_sub_u32 s93, s93, %d" % (4 * 7 * 1024))
    E("buffer_load_dwordx4 v%d, %s, s93 offen sc1 lds" % (va, sr(S_WS, 4)))
def p2_setup():
    if OPT["MAP1"] == "4x7":
        E("s_cmp_ge_u32 s%d, 7" % sCG); E("s_cselect_b32 s94, 1, 0"); E("s_mul_i32 s95, s94, 7"); E("s_sub_u32 s95, s%d, s95" % sCG)
    else:
        E("s_and_b32 s94, s%d, 1" % sCG); E("s_lshr_b32 s95, s%d, 1" % sCG)
    E("s_lshl_b32 s71, s%d, 1" % sRT); E("s_add_u32 s94, s94, s71")
    E("s_mul_i32 s71, s%d, %d" % (sW, 14 * 1024)); E("s_mul_i32 s75, s%d, %d" % (sW, 7 * 1024)); E("s_add_u32 s75, s75, %d" % (112 * 1024))
    E("s_mul_i32 s77, s95, %d" % (2 * NKS * 1024)); E("s_add_u32 s77, s77, %d" % WB0)
    E("s_add_u32 s82, s77, s71"); E("s_add_u32 s83, s82, %d" % (NKS * 1024)); E("s_add_u32 s84, s77, s75"); E("s_add_u32 s85, s84, %d" % (NKS * 1024))
    E("s_mul_i32 s77, s94, %d" % (2 * NKS * 1024))
    E("s_add_u32 s86, s77, s71"); E("s_add_u32 s87, s86, %d" % (NKS * 1024)); E("s_add_u32 s88, s77, s75"); E("s_add_u32 s89, s88, %d" % (NKS * 1024))
    r = OPT["ROT"]
    E("s_mul_i32 s4, s95, %d" % (2048 * r)); E("s_mul_i32 s18, s95, %d" % (1024 * r))
    for i in range(1, 21):
        if i == 14: continue
        E("s_add_u32 s%d, s%d, 1024" % (ROTS[i], ROTS[i - 1])); E("s_cmp_eq_u32 s%d, %d" % (ROTS[i], 14336 if i < 14 else 7168))
        E("s_cselect_b32 s%d, 0, s%d" % (ROTS[i], ROTS[i]))
    E("s_lshl_b32 s27, s%d, 14" % sW); E("s_sub_u32 s28, s27, 65536")
npoll = [0]
def poll(ld, cmp_, mlo):
    n = npoll[0]; npoll[0] += 1
    E("s_mov_b32 s81, 0")
    L("POLL%d" % n)
    E(ld); E("s_waitcnt vmcnt(0)"); E(cmp_); E("s_nop 4")
    E("s_andn2_b32 s71, %s, vcc_lo" % mlo); E("s_cbranch_scc0 POLLD%d" % n)
    E("s_add_u32 s81, s81, 1"); E("s_cmp_gt_u32 s81, 0x10000"); E("s_cbranch_scc1 POLLD%d" % n)
    E("s_sleep 1"); E("s_branch POLL%d" % n)
    L("POLLD%d" % n)
def gelu_setup():
    c0 = -2.0 * math.log2(math.e) * math.sqrt(2.0 / math.pi)
    E("s_mov_b32 s30, 1.0"); E("s_mov_b32 s72, %s" % f2u(c0 * 0.044715)); E("v_mov_b32 %s, %s" % (vr(vT + 8), f2u(c0)))
    E("v_lshlrev_b32 %s, 4, %s" % (vr(vT + 9), vr(vL)))
    E("s_lshl_b32 s75, s%d, 2" % sRT); E("s_add_u32 s73, s75, s%d" % sTA); E("s_xor_b32 s74, s73, 1")
    E("s_mul_i32 s73, s73, %d" % (NKS * 1024)); E("s_mul_i32 s74, s74, %d" % (NKS * 1024))
    E("s_lshl_b32 s75, s%d, 13" % sCG); E("s_lshr_b32 s76, s%d, 1" % sW); E("s_lshl_b32 s76, s76, 11")
    E("s_add_u32 s75, s75, s76"); E("s_add_u32 s76, s73, %d" % (112 * 1024))
    E("s_add_u32 s73, s73, s75"); E("s_add_u32 s74, s74, s75")
    E("s_lshl_b32 s75, s%d, 12" % sCG); E("s_add_u32 s76, s76, s75")
def dump_stamps(base):
    if OPT["STAMP"]:
        E("s_lshl_b32 s92, s2, 3"); E("s_add_u32 s92, s92, s%d" % sW); E("s_lshl_b32 s92, s92, 8"); E("s_add_u32 s92, s92, %d" % base)
        E("s_mov_b32 s%d, %d" % (S_WS + 2, 1 << 26)); E("v_lshlrev_b32 v1, 2, v%d" % vL)
        E("buffer_store_dword v0, v1, %s, s92 offen" % sr(S_WS, 4))

def k1():
    L(NAME + "_kernel")
    E("s_cmp_ge_u32 s2, 256"); E("s_cbranch_scc1 K1_END")
    E("s_add_u32 s2, s2, 224"); E("s_and_b32 s2, s2, 255")
    load_args()
    E("v_lshrrev_b32 v2, 6, v0"); E("v_and_b32 v%d, 63, v0" % vL); E("v_readfirstlane_b32 s%d, v2" % sW)
    if OPT["STAMP"]: E("s_nop 1"); E("v_mov_b32 v0, 0")
    E("s_waitcnt lgkmcnt(0)")
    stamp(0)
    srd(S_X, P_X, XN); srd(S_WS, P_WS, WS_SZ)
    E("s_cmp_ge_u32 s2, 224"); E("s_cbranch_scc1 K1_PREP")
    E("s_and_b32 s71, s2, 7"); E("s_lshr_b32 s72, s2, 3")
    if OPT["MAP1"] == "4x7":
        E("s_lshr_b32 s73, s71, 1"); E("s_lshl_b32 s73, s73, 2"); E("s_and_b32 s74, s72, 3"); E("s_add_u32 s%d, s73, s74" % sRT)
        E("s_and_b32 s73, s71, 1"); E("s_mul_i32 s73, s73, 7"); E("s_lshr_b32 s74, s72, 2"); E("s_add_u32 s%d, s73, s74" % sCG)
    else:
        E("s_lshl_b32 s73, s71, 1"); E("s_and_b32 s74, s72, 1"); E("s_add_u32 s%d, s73, s74" % sRT); E("s_lshr_b32 s%d, s72, 1" % sCG)
    E("s_cmp_lt_u32 s%d, 4" % sW)
    E("s_cselect_b32 s%d, s%d, s%d" % (S_B, P_BRE, P_BIM)); E("s_cselect_b32 s%d, s%d, s%d" % (S_B + 1, P_BRE + 1, P_BIM + 1))
    E("s_cselect_b32 s%d, s%d, s%d" % (S_W, P_WG, P_WU)); E("s_cselect_b32 s%d, s%d, s%d" % (S_W + 1, P_WG + 1, P_WU + 1))
    E("s_and_b32 s%d, s%d, 0xffff" % (S_B + 1, S_B + 1)); E("s_mov_b32 s%d, %d" % (S_B + 2, BN)); E("s_mov_b32 s%d, 0x20000" % (S_B + 3))
    E("s_and_b32 s%d, s%d, 0xffff" % (S_W + 1, S_W + 1)); E("s_mov_b32 s%d, %d" % (S_W + 2, WN)); E("s_mov_b32 s%d, 0x20000" % (S_W + 3))
    E("s_lshl_b32 s%d, s%d, 11" % (sM1, sW)); E("s_lshl_b32 s%d, s%d, 10" % (sM2, sW))
    E("s_and_b32 s71, s%d, 1" % sW); E("s_lshl_b32 s71, s71, 1"); E("s_bfe_u32 s72, s%d, 0x10001" % sW); E("s_add_u32 s%d, s71, s72" % sTA)
    T = vT
    C("DMA source offsets")
    E("s_movk_i32 s77, 896"); E("s_and_b32 s72, s%d, 3" % sW)
    E("v_lshrrev_b32 %s, 4, %s" % (vr(T), vr(vL))); E("v_and_b32 %s, 15, %s" % (vr(T + 1), vr(vL)))
    E("v_lshlrev_b32 %s, 2, %s" % (vr(T + 2), vr(T))); E("v_xor_b32 %s, %s, %s" % (vr(T + 1), vr(T + 1), vr(T + 2)))
    E("v_mul_u32_u24 %s, 3584, %s" % (vr(T), vr(T))); E("v_lshl_add_u32 %s, %s, 4, %s" % (vr(T), vr(T + 1), vr(T)))
    E("s_mul_i32 s71, s72, %d" % (8 * 3584)); E("s_lshl_b32 s73, s%d, 8" % sCG); E("s_add_u32 s71, s71, s73")
    E("v_add_u32 %s, s71, %s" % (vr(vWD), vr(T)))
    dma_part(0, 3)
    for m, dst in ((0, vXD0), (1, vXD1)):
        E("v_lshrrev_b32 %s, 3, %s" % (vr(T), vr(vL)))
        E("s_lshl_b32 s71, s%d, 4" % sW); E("s_add_u32 s71, s71, %d" % (8 * m)); E("v_add_u32 %s, s71, %s" % (vr(T), vr(T)))
        E("v_and_b32 %s, 31, %s" % (vr(T + 1), vr(T)))
        perm(T + 2, T + 1, T + 3)
        E("v_and_b32 %s, 96, %s" % (vr(T), vr(T))); E("v_add_u32 %s, %s, %s" % (vr(T), vr(T), vr(T + 2)))
        E("s_lshl_b32 s71, s%d, 7" % sRT); E("v_add_u32 %s, s71, %s" % (vr(T), vr(T)))
        E("v_mul_lo_u32 %s, %s, s77" % (vr(T), vr(T)))
        E("v_bfe_u32 %s, %s, 1, 3" % (vr(T + 1), vr(T + 1))); E("v_and_b32 %s, 7, %s" % (vr(T + 2), vr(vL)))
        E("v_xor_b32 %s, %s, %s" % (vr(T + 1), vr(T + 1), vr(T + 2))); E("v_lshl_add_u32 %s, %s, 4, %s" % (vr(dst), vr(T + 1), vr(T)))
        dma_part(0, m)
    E("v_lshrrev_b32 %s, 3, %s" % (vr(T), vr(vL))); E("s_and_b32 s72, s%d, 3" % sW); E("s_lshl_b32 s71, s72, 3")
    E("v_add_u32 %s, s71, %s" % (vr(T), vr(T))); E("v_bfe_u32 %s, %s, 1, 3" % (vr(T + 1), vr(T)))
    E("s_lshl_b32 s71, s%d, 5" % sCG); E("v_add_u32 %s, s71, %s" % (vr(T), vr(T))); E("v_mul_lo_u32 %s, %s, s77" % (vr(T), vr(T)))
    E("v_xor_b32 %s, %s, %s" % (vr(T + 1), vr(T + 1), vr(T + 2))); E("v_lshl_add_u32 %s, %s, 4, %s" % (vr(vBD), vr(T + 1), vr(T)))
    dma_part(0, 2)
    C("SSM parameter loads (p = cg*32 + (l&31))")
    E("v_and_b32 %s, 31, %s" % (vr(T), vr(vL))); E("s_lshl_b32 s71, s%d, 5" % sCG)
    E("v_add_lshl_u32 %s, %s, s71, 1" % (vr(T + 10), vr(T)))
    for p, d in ((P_LRE, T + 11), (P_LIM, T + 12), (P_LDT, T + 13)):
        E("global_load_ushort %s, %s, %s" % (vr(d), vr(T + 10), sr(p, 2)))
    for j in range(1, 4): dma_group(j)
    C("LDS fragment read addresses")
    E("v_lshrrev_b32 %s, 5, %s" % (vr(T + 1), vr(vL))); E("v_bfe_u32 %s, %s, 1, 3" % (vr(T + 2), vr(T)))
    E("s_lshl_b32 s71, s%d, 12" % sTA); E("s_xor_b32 s72, s71, 4096")
    for ks in range(4):
        E("v_add_u32 %s, %d, %s" % (vr(T + 3), 2 * ks, vr(T + 1))); E("v_xor_b32 %s, %s, %s" % (vr(T + 3), vr(T + 3), vr(T + 2)))
        E("v_lshlrev_b32 %s, 4, %s" % (vr(T + 3), vr(T + 3))); E("v_lshl_add_u32 %s, %s, 7, %s" % (vr(T + 3), vr(T), vr(T + 3)))
        E("v_add_u32 %s, s71, %s" % (vr(vXA + ks), vr(T + 3))); E("v_add_u32 %s, s72, %s" % (vr(vXB + ks), vr(T + 3)))
        E("v_add_u32 %s, 16384, %s" % (vr(vBA + ks), vr(T + 3)))
    E("v_bfe_u32 %s, %s, 2, 2" % (vr(T + 2), vr(vL)))
    E("v_lshl_add_u32 %s, %s, 3, %s" % (vr(T + 3), vr(T + 1), vr(T + 2)))
    E("v_lshlrev_b32 %s, 8, %s" % (vr(T + 3), vr(T + 3))); E("s_lshr_b32 s71, s%d, 1" % sW)
    E("v_xor_b32 %s, s71, %s" % (vr(T + 2), vr(T + 2))); E("v_lshl_add_u32 %s, %s, 6, %s" % (vr(T + 3), vr(T + 2), vr(T + 3)))
    E("v_bfe_u32 %s, %s, 4, 1" % (vr(T + 2), vr(vL))); E("v_lshl_add_u32 %s, %s, 5, %s" % (vr(T + 3), vr(T + 2), vr(T + 3)))
    E("v_and_b32 %s, 3, %s" % (vr(T + 2), vr(vL))); E("v_lshl_add_u32 %s, %s, 3, %s" % (vr(T + 3), vr(T + 2), vr(T + 3)))
    E("v_add_u32 %s, %d, %s" % (vr(vWA0), WS0, vr(T + 3))); E("v_add_u32 %s, %d, %s" % (vr(vWA1), WS0 + 49152, vr(T + 3)))
    srd(S_DBG, P_DBG, 256); p2_setup()
    E("s_and_b32 s71, s2, 7"); E("s_lshl_b32 s71, s71, 7"); E("s_add_u32 s71, s71, %d" % FL0); E("s_lshl_b32 s72, s2, 7"); E("s_and_b32 s72, s72, 128")
    E("s_cmp_eq_u32 s%d, 4" % sW); E("s_cselect_b32 s71, s71, 0x7f000000"); E("s_cselect_b32 s72, s72, 0x7f000000")
    E("v_and_b32 v45, 31, v%d" % vL); E("v_lshl_add_u32 v45, v45, 2, s71"); E("v_mov_b32 v44, s72"); E("v_lshlrev_b32 v%d, 4, v%d" % (vP2W, vL))
    E("s_cmp_ge_u32 s%d, 4" % sW); E("s_cbranch_scc1 K1_PLAIN")
    E("s_waitcnt vmcnt(9)")
    a, b, d = T + 11, T + 12, T + 13
    for r in (a, b, d): E("v_lshlrev_b32 %s, 16, %s" % (vr(r), vr(r)))
    E("v_mul_f32 %s, %s, %s" % (vr(d), f2u(math.log2(math.e)), vr(d))); E("v_exp_f32 %s, %s" % (vr(d), vr(d))); E("s_nop 0")
    E("v_cvt_pk_bf16_f32 %s, %s, %s" % (vr(d), vr(d), vr(d))); E("v_lshlrev_b32 %s, 16, %s" % (vr(d), vr(d)))
    E("v_mul_f32 %s, %s, %s" % (vr(T), vr(d), vr(a))); E("v_mul_f32 %s, %s, %s" % (vr(T + 1), vr(d), vr(b)))
    E("v_mul_f32 %s, %s, %s" % (vr(T), f2u(math.log2(math.e)), vr(T))); E("v_mul_f32 %s, %s, %s" % (vr(T + 1), f2u(0.5 / math.pi), vr(T + 1)))
    E("v_rndne_f32 %s, %s" % (vr(T + 2), vr(T + 1))); E("v_sub_f32 %s, %s, %s" % (vr(T + 1), vr(T + 1), vr(T + 2)))
    E("v_exp_f32 %s, %s" % (vr(T), vr(T))); E("v_cos_f32 %s, %s" % (vr(T + 2), vr(T + 1))); E("v_sin_f32 %s, %s" % (vr(T + 3), vr(T + 1))); E("s_nop 0")
    E("v_mul_f32 %s, %s, %s" % (vr(vLR), vr(T), vr(T + 2))); E("v_mul_f32 %s, %s, %s" % (vr(vLI), vr(T), vr(T + 3)))
    C("coef = 2*(lam-1)/Lam")
    E("v_add_f32 %s, -1.0, %s" % (vr(T), vr(vLR))); E("v_mul_f32 %s, %s, %s" % (vr(T + 1), vr(a), vr(a)))
    E("v_fma_f32 %s, %s, %s, %s" % (vr(T + 1), vr(b), vr(b), vr(T + 1))); E("v_rcp_f32 %s, %s" % (vr(T + 1), vr(T + 1)))
    E("v_mul_f32 %s, %s, %s" % (vr(vCR), vr(T), vr(a))); E("v_mul_f32 %s, %s, %s" % (vr(vCI), vr(vLI), vr(a)))
    E("v_fma_f32 %s, %s, %s, %s" % (vr(vCR), vr(vLI), vr(b), vr(vCR))); E("v_fma_f32 %s, -%s, %s, %s" % (vr(vCI), vr(T), vr(b), vr(vCI)))
    E("v_add_f32 %s, %s, %s" % (vr(T + 1), vr(T + 1), vr(T + 1)))
    E("v_mul_f32 %s, %s, %s" % (vr(vCR), vr(vCR), vr(T + 1))); E("v_mul_f32 %s, %s, %s" % (vr(vCI), vr(vCI), vr(T + 1)))
    cmul(T, T + 1, vLR, vLI, vLR, vLI); cmul(T + 2, T + 3, T, T + 1, T, T + 1); cmul(T, T + 1, T + 2, T + 3, T + 2, T + 3)
    cmul(vL16R, vL16I, T, T + 1, T, T + 1)
    cmul(T, T + 1, vL16R, vL16I, vL16R, vL16I); cmul(T + 2, T + 3, T, T + 1, T, T + 1); cmul(vL128R, vL128I, T + 2, T + 3, T + 2, T + 3)
    stamp(1)
    main_loop(True)
    if OPT["PRIO"] > 1: E("s_setprio 2")
    stamp(2)
    gelu_setup()
    E("v_mov_b32 v%d, %d" % (T + 11, NLO)); E("ds_read_b32 v%d, v%d" % (T + 11, T + 11))
    C("pass 1: end state of this lane's 16 steps")
    H = [T, T + 2]
    cfma(H[1], H[1] + 1, vLR, vLI, ASR, ASI, ASR + 1, ASI + 1)
    for j in range(2, 16):
        cfma(H[j & 1], H[j & 1] + 1, vLR, vLI, H[(j - 1) & 1], H[(j - 1) & 1] + 1, ASR + j, ASI + j)
    E("v_and_b32 %s, 31, %s" % (vr(T + 4), vr(vL))); E("v_lshlrev_b32 %s, 3, %s" % (vr(T + 4), vr(T + 4)))
    E("s_lshl_b32 s71, s%d, 9" % sTA); E("s_add_u32 s71, s71, %d" % EXO)
    E("v_lshl_add_u32 %s, %s, 3, s71" % (vr(T + 5), vr(vL)))
    E("ds_write_b64 %s, %s" % (vr(T + 5), vr(H[1], 2)))
    E("v_add_u32 %s, %d, %s" % (vr(T + 5), EXO, vr(T + 4)))
    E("s_waitcnt lgkmcnt(0)"); E("s_barrier")
    for s in range(8): E("ds_read_b64 %s, %s offset:%d" % (vr(vEE + 2 * s, 2), vr(T + 5), s * 256))
    E("s_lshl_b32 s78, s%d, 13" % sCG); E("s_add_u32 s78, s78, %d" % E0); E("s_add_u32 s79, s78, 4096")
    E("v_mov_b32 %s, %s" % (vr(T + 10), vr(T + 4))); E("v_lshlrev_b32 %s, 1, %s" % (vr(T + 12), vr(T + 4)))
    E("v_readfirstlane_b32 s38, v%d" % (T + 11))
    E("s_cmp_lg_u32 s%d, 0" % sW); E("s_cbranch_scc1 K1_NOPUB")
    E("s_waitcnt lgkmcnt(0)")
    cfma(H[1], H[1] + 1, vL16R, vL16I, vEE, vEE + 1, vEE + 2, vEE + 3)
    for s in range(2, 8):
        cfma(H[s & 1], H[s & 1] + 1, vL16R, vL16I, H[(s - 1) & 1], H[(s - 1) & 1] + 1, vEE + 2 * s, vEE + 2 * s + 1)
    E("s_lshl_b32 s71, s%d, 9" % sRT); E("s_add_u32 s71, s71, s78")
    E("v_mov_b32 %s, %s" % (vr(T + 4), vr(H[1]))); E("v_mov_b32 %s, s38" % vr(T + 5)); E("v_mov_b32 %s, %s" % (vr(T + 6), vr(H[1] + 1))); E("v_mov_b32 %s, s38" % vr(T + 7))
    E("buffer_store_dwordx4 %s, %s, %s, s71 offen sc1" % (vr(T + 4, 4), vr(T + 12), sr(S_WS, 4)))
    L("K1_NOPUB")
    C("gate values for this lane's 16 steps -> v2..v17")
    E("v_lshrrev_b32 v18, 5, v%d" % vL); E("v_lshlrev_b32 v18, 6, v18"); E("s_lshl_b32 s71, s%d, 2" % sRT); E("s_add_u32 s71, s71, s%d" % sTA)
    E("s_lshl_b32 s71, s71, 7"); E("s_add_u32 s71, s71, %d" % G0)
    for q in range(4): E("buffer_load_dwordx4 %s, v18, %s, s71 offen offset:%d sc1" % (vr(2 + 4 * q, 4), sr(S_WS, 4), 16 * q))
    stamp(3)
    gelu_calc(0); gelu_calc(1)
    stamp(4)
    C("look-back")
    RC = [64 + 4 * c if c < 8 else 128 + 4 * (c - 8) for c in range(15)]
    E("s_mov_b32 s81, 0")
    L("K1_LBP")
    for c in range(15):
        E("s_cmp_le_u32 s%d, %d" % (sRT, c)); E("s_cbranch_scc1 K1_LBL")
        E("buffer_load_dwordx4 %s, %s, %s, s%d offen offset:%d sc1" % (vr(RC[c], 4), vr(T + 12), sr(S_WS, 4), 78 + c // 8, (c % 8) * 512))
    L("K1_LBL")
    E("v_mov_b32 %s, 0" % vr(T + 6)); E("s_waitcnt vmcnt(0)")
    for c in range(15):
        E("s_cmp_le_u32 s%d, %d" % (sRT, c)); E("s_cbranch_scc1 K1_LBC")
        E("v_xor_b32 %s, s38, %s" % (vr(T + 7), vr(RC[c] + 1))); E("v_xor_b32 %s, s38, %s" % (vr(T), vr(RC[c] + 3)))
        E("v_or3_b32 %s, %s, %s, %s" % (vr(T + 6), vr(T + 6), vr(T + 7), vr(T)))
    L("K1_LBC")
    E("v_cmp_ne_u32 vcc, 0, %s" % vr(T + 6)); E("s_nop 4"); E("s_or_b32 s71, vcc_lo, vcc_hi"); E("s_cbranch_scc0 K1_LBK")
    E("s_add_u32 s81, s81, 1"); E("s_cmp_gt_u32 s81, 0x10000"); E("s_cbranch_scc1 K1_LBK")
    E("s_sleep 1"); E("s_branch K1_LBP")
    L("K1_LBK")
    stamp(9)
    gelu_st(0); gelu_st(1)
    E("v_mov_b32 %s, 0" % vr(T)); E("v_mov_b32 %s, 0" % vr(T + 1))
    E("v_lshrrev_b32 %s, 5, %s" % (vr(T + 6), vr(vL))); E("s_lshl_b32 s71, s%d, 1" % sTA); E("v_add_u32 %s, s71, %s" % (vr(T + 6), vr(T + 6)))
    E("s_waitcnt lgkmcnt(0)")
    E("s_cmp_eq_u32 s%d, 0" % sRT); E("s_cbranch_scc1 K1_LBD")
    for c in range(1, 15):
        E("s_cmp_le_u32 s%d, %d" % (sRT, c)); E("s_cbranch_scc1 K1_LX%d" % c)
        cfma(RC[c], RC[c] + 2, vL128R, vL128I, RC[c - 1], RC[c - 1] + 2, RC[c], RC[c] + 2)
    E("v_mov_b32 %s, %s" % (vr(T), vr(RC[14]))); E("v_mov_b32 %s, %s" % (vr(T + 1), vr(RC[14] + 2)))
    L("K1_LBD")
    for s in range(7):
        E("v_cmp_lt_u32 vcc, %d, %s" % (s, vr(T + 6)))
        cfma(T + 2, T + 3, vL16R, vL16I, T, T + 1, vEE + 2 * s, vEE + 2 * s + 1)
        E("v_cndmask_b32 %s, %s, %s, vcc" % (vr(T), vr(T), vr(T + 2))); E("v_cndmask_b32 %s, %s, %s, vcc" % (vr(T + 1), vr(T + 1), vr(T + 3)))
    C("pass 2")
    if OPT["EARLY"]:
        for i in (13, 14): p2_load('W', i, WSL[i], vP2W)
    for j in range(16):
        hr, hi = (T, T + 1) if j == 0 else (ASR + j - 1, ASI + j - 1)
        cfma(ASR + j, ASI + j, vLR, vLI, hr, hi, ASR + j, ASI + j)
    OR_, OI = vEC, vEC + 8
    for j in range(0, 16, 2):
        P = lambda b: vr(b, 2)
        E("v_pk_mul_f32 %s, %s, %s op_sel_hi:[0,1]" % (P(T + 4), P(vCR), P(2 + j)))
        E("v_pk_mul_f32 %s, %s, %s op_sel:[1,0]" % (P(T + 6), P(vCR), P(2 + j)))
        E("v_pk_mul_f32 %s, %s, %s" % (P(T), P(T + 4), P(ASR + j))); E("v_pk_mul_f32 %s, %s, %s" % (P(T + 2), P(T + 4), P(ASI + j)))
        E("v_pk_fma_f32 %s, %s, %s, %s neg_lo:[1,0,0] neg_hi:[1,0,0]" % (P(T), P(T + 6), P(ASI + j), P(T)))
        E("v_pk_fma_f32 %s, %s, %s, %s neg_lo:[1,0,1] neg_hi:[1,0,1]" % (P(T + 2), P(T + 6), P(ASR + j), P(T + 2)))
        E("v_cvt_pk_bf16_f32 %s, %s, %s" % (vr(OR_ + j // 2), vr(T), vr(T + 1)))
        E("v_cvt_pk_bf16_f32 %s, %s, %s" % (vr(OI + j // 2), vr(T + 2), vr(T + 3)))
    C("transpose through LDS: rows k (re p, im p) of 64 B (32 t)")
    E("s_lshl_b32 s71, s%d, 12" % sW); E("s_add_u32 s71, s71, %d" % TRO)
    E("v_lshrrev_b32 %s, 5, %s" % (vr(T), vr(vL))); E("v_lshlrev_b32 %s, 5, %s" % (vr(T + 1), vr(T)))
    E("v_lshl_add_u32 %s, %s, 3, %s" % (vr(T + 1), vr(T + 10), vr(T + 1))); E("v_add_u32 %s, s71, %s" % (vr(T + 1), vr(T + 1)))
    E("ds_write_b128 %s, %s" % (vr(T + 1), vr(OR_, 4))); E("ds_write_b128 %s, %s offset:16" % (vr(T + 1), vr(OR_ + 4, 4)))
    E("ds_write_b128 %s, %s offset:2048" % (vr(T + 1), vr(OI, 4))); E("ds_write_b128 %s, %s offset:2064" % (vr(T + 1), vr(OI + 4, 4)))
    E("v_bfe_u32 %s, %s, 2, 2" % (vr(T + 2), vr(vL))); E("v_lshl_add_u32 %s, %s, 3, %s" % (vr(T + 2), vr(T), vr(T + 2)))
    E("v_lshlrev_b32 %s, 6, %s" % (vr(T + 2), vr(T + 2)))
    E("v_and_b32 %s, 1, %s" % (vr(T + 3), vr(vL))); E("v_lshl_add_u32 %s, %s, 5, %s" % (vr(T + 2), vr(T + 3), vr(T + 2)))
    E("v_bfe_u32 %s, %s, 4, 1" % (vr(T + 3), vr(vL))); E("v_lshl_add_u32 %s, %s, 4, %s" % (vr(T + 2), vr(T + 3), vr(T + 2)))
    E("v_bfe_u32 %s, %s, 1, 1" % (vr(T + 3), vr(vL))); E("v_lshl_add_u32 %s, %s, 3, %s" % (vr(T + 2), vr(T + 3), vr(T + 2)))
    E("v_add_u32 %s, s71, %s" % (vr(T + 2), vr(T + 2)))
    E("s_waitcnt lgkmcnt(0)")
    if OPT["EARLY"]: p2_load('W', 12, WSL[12], vP2W)
    for q in range(4):
        E("ds_read_b64_tr_b16 %s, %s offset:%d" % (vr(ASR + 4 * q, 2), vr(T + 2), q * 1024))
        E("ds_read_b64_tr_b16 %s, %s offset:%d" % (vr(ASR + 4 * q + 2, 2), vr(T + 2), q * 1024 + 256))
    for q in range(4):
        E("s_waitcnt lgkmcnt(%d)" % (6 - 2 * q))
        E("buffer_store_dwordx4 %s, %s, %s, s76 offen offset:%d%s" % (vr(ASR + 4 * q, 4), vr(vT + 9), sr(S_WS, 4), q * 1024, SC))
    stamp(13)
    if OPT["PRIO"] > 1: E("s_setprio 0")
    E("s_branch K1_JOIN")
    spins()
    for c in range(1, 15):
        L("K1_LX%d" % c); E("v_mov_b32 %s, %s" % (vr(T), vr(RC[c - 1]))); E("v_mov_b32 %s, %s" % (vr(T + 1), vr(RC[c - 1] + 2))); E("s_branch K1_LBD")
    L("K1_PLAIN")
    stamp(1)
    pc = main_loop(False)
    stamp(2)
    gelu_setup()
    for i in range(12, 15): p2_load('W', i, WSL[i], vP2W)
    E("s_waitcnt vmcnt(%d)" % (pc + 6)); w4_check("v_cmp_eq_u32 vcc, s38, v47", "G")
    E("s_barrier")
    stamp(3)
    ex = [(i, j, vP2W, o) for i in range(15, 21) for j in range(2) for o in range(2)] if OPT["PACE"] else None
    gelu_calc(0, ex); gelu_st(0); gelu_calc(1, ex); gelu_st(1)
    stamp(4)
    L("K1_JOIN")
    E("s_waitcnt vmcnt(0)"); stamp(14); E("s_barrier")
    stamp(5)
    E("v_mov_b32 v2, v%d" % vP2W)
    E("s_cmp_lg_u32 s%d, 4" % sW); E("s_cbranch_scc1 K1_NOPOLL")
    if OPT["PRIO"]: E("s_setprio 3")
    E("s_lshl_b32 s80, s%d, 7" % sRT); E("s_add_u32 s80, s80, %d" % (FL0 + 2048)); E("s_lshl_b32 s71, s%d, 2" % sCG)
    E("v_mov_b32 v3, s71"); E("v_mov_b32 v4, s38")
    E("buffer_store_dword v4, v3, %s, s80 offen sc1" % sr(S_WS, 4))
    E("v_and_b32 v5, 15, v%d" % vL); E("v_lshlrev_b32 v5, 2, v5")
    poll("buffer_load_dword v6, v5, %s, s80 offen sc1" % sr(S_WS, 4), "v_cmp_eq_u32 vcc, s38, v6", "0x3fff")
    stamp(15)
    if OPT["PRIO"]: E("s_setprio 0")
    L("K1_NOPOLL")
    E("s_cmp_ge_u32 s%d, 4" % sW); E("s_cbranch_scc1 K1_NOW")
    if not OPT["LATEW"]:
        for i in range(8, 12 if OPT["EARLY"] else 15): p2_load('W', i, WSL[i], 2)
    L("K1_NOW")
    if not OPT["PACE"]:
        for i in range(15, 21):
            for j in range(2): lds_w(i, j, 2, 0)
    p2_main()
    L("K1_PREP")
    E("s_sub_u32 s70, s2, 224"); E("s_lshl_b32 s65, s%d, 5" % sW); E("s_add_u32 s65, s65, s70")
    E("s_lshl_b32 s70, s70, 3"); E("s_add_u32 s70, s70, s%d" % sW)
    srd(S_T, P_GW, 896)
    E("v_lshrrev_b32 v2, 3, v1"); E("s_lshl_b32 s71, s70, 3"); E("v_add_u32 v2, s71, v2")
    E("v_and_b32 v3, 7, v1"); E("v_lshlrev_b32 v3, 4, v3"); E("v_mul_u32_u24 v4, 896, v2"); E("v_add_u32 v4, v4, v3")
    E("v_lshlrev_b32 v5, 4, v1"); E("v_and_b32 v122, 7, v1"); E("v_lshlrev_b32 v122, 7, v122"); E("s_mov_b32 s38, %d" % FL0)
    E("s_cmp_ge_u32 s65, 224"); E("s_cbranch_scc1 K1_PN")
    E("s_cmp_ge_u32 s65, 112"); E("s_cbranch_scc1 K1_PC")
    C("W_down k-step s65 -> fragments")
    srd(S_W, P_WD, WN)
    E("s_mul_i32 s71, s65, 14336"); E("s_mul_i32 s72, s%d, 14336" % sW)
    for i in range(14):
        E("s_add_u32 m0, s72, %d" % (i * 1024)); E("s_add_u32 s73, s71, %d" % (i * 1024))
        E("buffer_load_dwordx4 v5, %s, s73 offen lds" % sr(S_W, 4))
    E("v_lshrrev_b32 v6, 5, v1"); E("v_bfe_u32 v7, v1, 2, 2"); E("v_lshl_add_u32 v6, v6, 2, v7"); E("v_mul_u32_u24 v6, 896, v6")
    E("v_bfe_u32 v7, v1, 4, 1"); E("v_lshl_add_u32 v6, v7, 5, v6"); E("v_and_b32 v7, 3, v1"); E("v_lshl_add_u32 v6, v7, 3, v6")
    E("v_add_u32 v6, s72, v6"); E("s_lshl_b32 s71, s65, 10"); E("s_add_u32 s71, s71, %d" % WB0)
    E("s_waitcnt vmcnt(0)")
    for nb in range(14):
        E("ds_read_b64_tr_b16 %s, v6 offset:%d" % (vr(64 + 4 * nb, 2), nb * 64))
        E("ds_read_b64_tr_b16 %s, v6 offset:%d" % (vr(66 + 4 * nb, 2), nb * 64 + 8 * 896))
    E("s_waitcnt lgkmcnt(0)")
    for nb in range(14):
        E("buffer_store_dwordx4 %s, v5, %s, s71 offen sc1" % (vr(64 + 4 * nb, 4), sr(S_WS, 4))); E("s_add_u32 s71, s71, %d" % (NKS * 1024))
    E("s_branch K1_PG")
    L("K1_PC")
    E("s_sub_u32 s66, s65, 112"); E("s_lshr_b32 s67, s66, 3"); E("s_bfe_u32 s68, s66, 0x10002"); E("s_and_b32 s69, s66, 3")
    E("s_cmp_eq_u32 s68, 0")
    E("s_cselect_b32 s%d, s%d, s%d" % (S_B, P_CRE, P_CIM)); E("s_cselect_b32 s%d, s%d, s%d" % (S_B + 1, P_CRE + 1, P_CIM + 1))
    E("s_and_b32 s%d, s%d, 0xffff" % (S_B + 1, S_B + 1)); E("s_mov_b32 s%d, %d" % (S_B + 2, BN)); E("s_mov_b32 s%d, 0x20000" % (S_B + 3))
    E("v_and_b32 v6, 31, v1"); E("s_lshl_b32 s71, s67, 5"); E("v_add_u32 v6, s71, v6"); E("v_mul_u32_u24 v6, 896, v6")
    E("v_lshrrev_b32 v7, 5, v1"); E("v_lshl_add_u32 v6, v7, 4, v6")
    E("s_mul_i32 s69, s69, 7"); E("s_lshl_b32 s71, s69, 5")
    for i in range(7): E("buffer_load_dwordx4 %s, v6, %s, s71 offen offset:%d" % (vr(64 + 4 * i, 4), sr(S_B, 4), i * 32))
    E("s_mul_i32 s72, s67, %d" % NKS); E("s_lshl_b32 s68, s68, 1"); E("s_add_u32 s72, s72, s68"); E("s_add_u32 s72, s72, %d" % (112 + WB0 // 1024))
    E("s_waitcnt vmcnt(0)")
    for i in range(7):
        E("s_add_u32 s73, s69, %d" % i); E("s_lshr_b32 s74, s73, 1"); E("s_lshl_b32 s74, s74, 2"); E("s_and_b32 s73, s73, 1")
        E("s_add_u32 s73, s73, s74"); E("s_add_u32 s73, s73, s72"); E("s_lshl_b32 s73, s73, 10")
        E("buffer_store_dwordx4 %s, v5, %s, s73 offen sc1" % (vr(64 + 4 * i, 4), sr(S_WS, 4)))
    E("s_branch K1_PG")
    L("K1_PN")
    srd(S_DBG, P_DBG, 256); E("v_mov_b32 v44, 0"); E("s_mov_b32 s71, %d" % FL0)
    E("s_cmp_lg_u32 s2, 224"); E("s_cbranch_scc1 K1_PN1")
    E("buffer_load_dword v42, v44, %s, s71 offen sc1" % sr(S_WS, 4)); E("v_and_b32 v44, 1, v1"); E("v_lshlrev_b32 v44, 7, v44"); E("v_mov_b32 v43, 1")
    E("s_waitcnt vmcnt(0)"); E("v_add_u32 v42, 0x9e3779b9, v42"); E("buffer_store_dwordx2 v[42:43], v44, %s, 0 offen sc1" % sr(S_DBG, 4))
    E("s_branch K1_PN2")
    L("K1_PN1")
    poll(LD_N, "v_cmp_eq_u32 vcc, 1, v43", "-1")
    L("K1_PN2")
    E("v_mov_b32 v123, v42")
    E("s_sub_u32 s38, s2, 224"); E("s_lshl_b32 s38, s38, 2"); E("s_add_u32 s38, s38, %d" % FL0)
    L("K1_PG")
    for i in range(7):
        E("buffer_load_dwordx4 %s, v4, %s, 0 offen offset:%d" % (vr(8 + 4 * i, 4), sr(S_X, 4), i * 128))
        E("buffer_load_dwordx4 %s, v3, %s, 0 offen offset:%d" % (vr(36 + 4 * i, 4), sr(S_T, 4), i * 128))
    E("s_waitcnt vmcnt(14)"); E("s_barrier")
    stamp(4)
    E("s_cmp_lg_u32 s%d, 7" % sW); E("s_cbranch_scc1 K1_PF")
    E("buffer_store_dword v123, v122, %s, s38 offen sc1" % sr(S_WS, 4))
    L("K1_PF")
    E("s_waitcnt vmcnt(0)")
    E("v_mov_b32 v6, 0"); E("v_mov_b32 v7, 0"); E("s_mov_b32 s71, 0xffff0000")
    for i in range(28):
        x, w = 8 + i, 36 + i
        E("v_lshlrev_b32 v124, 16, v%d" % x); E("v_and_b32 v125, s71, v%d" % x); E("v_lshlrev_b32 v126, 16, v%d" % w); E("v_and_b32 v127, s71, v%d" % w)
        E("v_mul_f32 v124, v124, v126"); E("v_mul_f32 v125, v125, v127"); E("v_cvt_pk_bf16_f32 v124, v124, v125")
        E("v_lshlrev_b32 v125, 16, v124"); E("v_and_b32 v124, s71, v124"); E("v_add_f32 v6, v6, v125"); E("v_add_f32 v7, v7, v124")
    E("v_add_f32 v6, v6, v7")
    for o in ("0x041F", "0x081F", "0x101F"):
        E("ds_swizzle_b32 v7, v6 offset:%s" % o); E("s_waitcnt lgkmcnt(0)"); E("v_add_f32 v6, v6, v7")
    E("v_cvt_pk_bf16_f32 v6, v6, v6"); E("v_lshlrev_b32 v6, 16, v6"); E("v_mul_f32 v6, %s, v6" % f2u(-math.log2(math.e)))
    E("v_exp_f32 v6, v6"); E("s_nop 0"); E("v_add_f32 v6, 1.0, v6"); E("v_rcp_f32 v6, v6"); E("s_nop 0")
    E("v_cvt_pk_bf16_f32 v6, v6, v6"); E("v_lshlrev_b32 v6, 16, v6"); E("v_lshlrev_b32 v2, 2, v2"); E("s_mov_b32 s71, %d" % G0)
    E("buffer_store_dword v6, v2, %s, s71 offen sc1" % sr(S_WS, 4))
    E("s_waitcnt vmcnt(0)"); E("s_barrier")
    E("s_cmp_lg_u32 s%d, 7" % sW); E("s_cbranch_scc1 K1_PE")
    E("buffer_store_dword v123, v122, %s, s38 offen offset:1024 sc1" % sr(S_WS, 4))
    L("K1_PE")
    stamp(5); dump_stamps(1 << 25)
    L("K1_END")
    E("s_endpgm")

def p2_main():
    C("phase 2")
    srd(S_T, P_D, 896); srd(S_B, P_OUT, 2048 * 448 * 4)
    E("v_and_b32 v4, 31, v1"); perm(5, 4, 6); E("s_lshl_b32 s73, s94, 6"); E("v_add_lshl_u32 v5, v5, s73, 2"); E("s_mov_b32 s74, %d" % G0)
    E("buffer_load_dword v8, v5, %s, s74 offen sc1" % sr(S_WS, 4)); E("buffer_load_dword v9, v5, %s, s74 offen offset:128 sc1" % sr(S_WS, 4))
    E("v_lshrrev_b32 v4, 4, v1"); E("v_and_b32 v6, 15, v1"); E("s_lshl_b32 s75, s95, 7"); E("v_lshl_add_u32 v7, v6, 3, s75")
    E("buffer_load_dwordx2 v[10:11], v7, %s, 0 offen" % sr(S_T, 4))
    E("s_and_b32 s75, s%d, 3" % sW); E("s_lshl_b32 s75, s75, 2"); E("s_lshr_b32 s76, s%d, 2" % sW); E("s_lshl_b32 s76, s76, 5")
    E("s_add_u32 s75, s75, s76"); E("s_add_u32 s75, s75, s73"); E("v_add_u32 v3, s75, v4")
    E("v_lshlrev_b32 v4, 2, v3"); E("v_mul_u32_u24 v3, 896, v3"); E("v_add_u32 v3, v3, v7"); E("s_movk_i32 s77, %d" % (16 * 896))
    E("buffer_load_dwordx2 v[12:13], v3, %s, 0 offen" % sr(S_X, 4)); E("buffer_load_dwordx2 v[14:15], v3, %s, s77 offen" % sr(S_X, 4))
    E("buffer_load_dword v6, v4, %s, s74 offen sc1" % sr(S_WS, 4)); E("buffer_load_dword v7, v4, %s, s74 offen offset:64 sc1" % sr(S_WS, 4))
    E("s_barrier")
    stamp(6)
    wreg = {i: WSL[i] for i in range(15)}; hreg = {}; order = []
    for i, R in enumerate(HSL): p2_load('H', i, R, 2); hreg[i] = R; order.append(i)
    nh = len(HSL)
    if OPT["LATEW"]:
        E("s_cmp_ge_u32 s%d, 4" % sW); E("s_cbranch_scc1 K1_NOW2")
        for i in range(8, 12): p2_load('W', i, WSL[i], 2)
        L("K1_NOW2")
    E("s_lshl_b32 s75, s%d, 14" % sW); E("v_add_u32 v5, s75, v2")
    for i in range(21):
        E("s_waitcnt vmcnt(%d)" % (2 * (len(order) - 1 - i)))
        if i == 14:
            E("v_sub_f32 v4, 1.0, v8"); E("v_sub_f32 v5, 1.0, v9"); E("v_cvt_pk_bf16_f32 v4, v4, v5")
            E("v_and_b32 v5, 0xffff0000, v4"); E("v_lshlrev_b32 v4, 16, v4"); E("s_nop 7")
            for k in range(4):
                for r in range(0, 16, 2): E("v_pk_mul_f32 %s, v[4:5], %s %s" % (vr(ACC2 + 16 * k + r, 2), vr(ACC2 + 16 * k + r, 2), "op_sel:[1,0]" if k & 1 else "op_sel_hi:[0,1]"))
            E("s_waitcnt lgkmcnt(0)"); E("s_nop 0")
        for k in range(4):
            A = ACC2 + 16 * k
            E("v_mfma_f32_32x32x16_bf16 %s, %s, %s, %s" % (vr(A, 16), vr(wreg[i] + 4 * (k >> 1), 4), vr(hreg[i] + 4 * (k & 1), 4), vr(A, 16) if i else "0"))
        for R in (hreg[i], wreg[i]):
            if nh < 21: p2_load('H', nh, R, 2); hreg[nh] = R; order.append(nh); nh += 1
        if 8 <= i < 14:
            R = wreg[i - 1]; wreg[i + 7] = R
            for j in range(2): E("ds_read_b128 %s, v5 offset:%d" % (vr(R + 4 * j, 4), (i - 8) * 2048 + j * 1024))
    stamp(7)
    C("partials -> LDS [wave][row 64][256B], chunk ^= row&7")
    E("v_and_b32 v16, 31, v1"); E("v_lshrrev_b32 v17, 5, v1"); E("v_and_b32 v18, 7, v1"); E("v_xor_b32 v17, v17, v18")
    E("s_lshl_b32 s75, s%d, 14" % sW); E("v_lshl_add_u32 v16, v16, 8, s75")
    for q in range(4):
        E("v_xor_b32 v18, %d, v17" % (2 * q)); E("v_lshl_add_u32 v%d, v18, 4, v16" % (20 + q))
    for k in range(4):
        for q in range(4): E("ds_write_b128 v%d, %s offset:%d" % (20 + q, vr(ACC2 + 16 * k + 4 * q, 4), (k & 1) * 8192 + (k >> 1) * 128))
    E("v_lshrrev_b32 v16, 4, v1"); E("s_lshl_b32 s75, s%d, 3" % sW); E("v_add_u32 v16, s75, v16"); E("v_and_b32 v18, 15, v1")
    for i in range(2):
        E("v_add_u32 v17, %d, v16" % (4 * i)); E("v_and_b32 v19, 7, v17"); E("v_xor_b32 v19, v19, v18"); E("v_lshlrev_b32 v19, 4, v19")
        E("v_lshl_add_u32 v%d, v17, 8, v19" % (24 + i)); E("v_add_u32 v%d, 65536, v%d" % (26 + i, 24 + i))
    E("v_lshlrev_b32 v3, 1, v3")
    E("v_lshlrev_b32 v16, 16, v10"); E("v_and_b32 v17, 0xffff0000, v10"); E("v_lshlrev_b32 v18, 16, v11"); E("v_and_b32 v19, 0xffff0000, v11")
    for i in range(2):
        x0, x1, S = 12 + 2 * i, 13 + 2 * i, 28 + 4 * i
        E("v_lshlrev_b32 v%d, 16, v%d" % (S, x0)); E("v_and_b32 v%d, 0xffff0000, v%d" % (S + 1, x0))
        E("v_lshlrev_b32 v%d, 16, v%d" % (S + 2, x1)); E("v_and_b32 v%d, 0xffff0000, v%d" % (S + 3, x1))
        for r in range(4): E("v_mul_f32 v%d, v%d, v%d" % (S + r, S + r, 16 + r))
        E("v_cvt_pk_bf16_f32 v%d, v%d, v%d" % (x0, S, S + 1)); E("v_cvt_pk_bf16_f32 v%d, v%d, v%d" % (x1, S + 2, S + 3))
        E("v_lshlrev_b32 v%d, 16, v%d" % (S, x0)); E("v_and_b32 v%d, 0xffff0000, v%d" % (S + 1, x0))
        E("v_lshlrev_b32 v%d, 16, v%d" % (S + 2, x1)); E("v_and_b32 v%d, 0xffff0000, v%d" % (S + 3, x1))
        for r in range(4): E("v_mul_f32 v%d, v%d, v%d" % (S + r, S + r, 6 + i))
    def red(sws, fin):
        n = len(sws)
        for i in range(2):
            for sw in sws: E("ds_read_b128 %s, v%d offset:%d" % (vr(48 + 32 * i + 4 * sw, 4), (24 if sw < 4 else 26) + i, (sw & 3) * 16384))
        for i in range(2):
            B, S = 48 + 32 * i, 28 + 4 * i
            for q, sw in enumerate(sws):
                if q % 2 == 0: E("s_waitcnt lgkmcnt(%d)" % (2 * n - 2 - n * i - q))
                for r in (0, 2): E("v_pk_add_f32 %s, %s, %s" % (vr(S + r, 2), vr(S + r, 2), vr(B + 4 * sw + r, 2)))
            if fin:
                E("s_mov_b32 s77, %d" % (i * 16 * 1792))
                E("buffer_store_dwordx4 %s, v3, %s, s77 offen" % (vr(S, 4), sr(S_B, 4)))
    E("s_waitcnt lgkmcnt(0)")
    if OPT["PRE"]:
        E("s_cmp_ge_u32 s%d, 4" % sW); E("s_cbranch_scc1 K1_RALL")
        E("v_mov_b32 v16, %d" % NLO); E("v_mov_b32 v17, 1"); E("ds_add_u32 v16, v17 offset:4"); E("s_mov_b32 s81, 0")
        L("K1_RSP")
        E("ds_read_b32 v17, v16 offset:4"); E("s_waitcnt lgkmcnt(0)"); E("v_readfirstlane_b32 s71, v17")
        E("s_add_u32 s81, s81, 1"); E("s_cmp_gt_u32 s81, 0x40000"); E("s_cbranch_scc1 K1_RSD")
        E("s_cmp_eq_u32 s71, 256"); E("s_cbranch_scc1 K1_RSD"); E("s_sleep 2"); E("s_branch K1_RSP")
        L("K1_RSD")
        red(range(4), False)
        E("s_barrier")
        red(range(4, 8), True)
        E("s_branch K1_RE")
        L("K1_RALL")
    E("s_barrier")
    red(range(8), True)
    L("K1_RE")
    stamp(8); dump_stamps(1 << 25)
    E("s_endpgm")

def desc(name, vg, acc):
    return [".p2align 6", ".amdhsa_kernel %s" % name, "  .amdhsa_next_free_vgpr %d" % vg, "  .amdhsa_next_free_sgpr 96",
            "  .amdhsa_accum_offset %d" % acc, "  .amdhsa_group_segment_fixed_size 0", "  .amdhsa_kernarg_size 136",
            "  .amdhsa_user_sgpr_count 2", "  .amdhsa_user_sgpr_kernarg_segment_ptr 1", "  .amdhsa_system_sgpr_workgroup_id_x 1",
            ".end_amdhsa_kernel"]
hdr = [l.rstrip("\n") for l in open("cdna_kernels/%s.s.ref" % NAME) if l.startswith(";   offset") or l.startswith("; Kernarg")]
KN = NAME + "_kernel"
hdr += ["; @launch grid=(256,1,1) block=(512,1,1) lds=163840", '.amdgcn_target "amdgcn-amd-amdhsa--gfx950"', ".text"]
k1()
body = [".globl %s" % KN, ".p2align 8", ".type %s,@function" % KN] + list(out)
tail = ['.section .rodata,"a"'] + desc(KN, 256, 256)
open(sys.argv[1], "w").write("\n".join(hdr + body + tail) + "\n")
```
